```python
import torch

def _softmax(x, axis=-1):
    return torch.softmax(x, dim=axis)
def _gelu(x):
    return torch.nn.functional.gelu(x, approximate="tanh")
def _silu(x):
    return torch.nn.functional.silu(x)
def _sigmoid(x):
    return torch.sigmoid(x)
def _layernorm(x, axis=-1, eps=1e-5):
    m = x.mean(dim=axis, keepdim=True)
    v = x.var(dim=axis, keepdim=True, unbiased=False)
    return (x - m) / torch.sqrt(v + eps)
def _scatter_add(tgt, idx, src, axis=0):
    return tgt.clone().index_add_(axis, idx, src)
def _segment_sum(src, seg, n):
    out = torch.zeros((n,) + src.shape[1:], dtype=src.dtype)
    return out.index_add_(0, seg, src)
def _pad(x, pw):
    flat = tuple(v for pair in reversed(pw) for v in pair)
    return torch.nn.functional.pad(x, flat)

kernel_name = 'concat_heads__ssm_conv_s4d__mha_block__prompt'

def setup_inputs():

    _w = (lambda a: (lambda t: t.to(torch.bfloat16) if t.is_floating_point() else t)(torch.as_tensor(a)))
    def _A_setup():
        Bsz, L, D, N = 1, 2048, 576, 128
        return {
            "u": _w((lambda *s: torch.randn(*s, dtype=torch.bfloat16) * 0.05)(Bsz, L, D)),
            "log_A_real": _w((lambda *s: torch.randn(*s, dtype=torch.bfloat16) * 3.2)(D, N) * 0.5),
            "A_imag": _w((lambda *s: torch.randn(*s, dtype=torch.bfloat16) * 0.1)(D, N) * 3.14),
            "C_real": _w((lambda *s: torch.randn(*s, dtype=torch.bfloat16) * 0.8)(D, N) / N ** 0.5),
            "C_imag": _w((lambda *s: torch.randn(*s, dtype=torch.bfloat16) * 1.6)(D, N) / N ** 0.5),
            "log_dt": _w((lambda *s: torch.randn(*s, dtype=torch.bfloat16) * 0.1)(D) * 0.5 - 4.0),
            "D_skip": _w((lambda *s: torch.randn(*s, dtype=torch.bfloat16) * 0.1)(D)),
        }
    _A_in = _A_setup()

    def _B_setup():
        B, S, D, H = 1, 2048, 576, 32
        return {
            "x": _w((lambda *s: torch.randn(*s, dtype=torch.bfloat16) * 0.2)(B, S, D)),
            "wqkv": _w((lambda *s: torch.randn(*s, dtype=torch.bfloat16) * 0.2)(D, 3 * D)),
            "wo": _w((lambda *s: torch.randn(*s, dtype=torch.bfloat16) * 0.05)(D, D)),
        }
    _B_in = _B_setup()

    return {
        "A_u": _A_in["u"],
        "A_log_A_real": _A_in["log_A_real"],
        "A_A_imag": _A_in["A_imag"],
        "A_C_real": _A_in["C_real"],
        "A_C_imag": _A_in["C_imag"],
        "A_log_dt": _A_in["log_dt"],
        "A_D_skip": _A_in["D_skip"],
        "B_x": _B_in["x"],
        "B_wqkv": _B_in["wqkv"],
        "B_wo": _B_in["wo"],
    }

def reference(A_u, A_log_A_real, A_A_imag, A_C_real, A_C_imag, A_log_dt, A_D_skip, B_x, B_wqkv, B_wo):
    def _A_ref(u, log_A_real, A_imag, C_real, C_imag, log_dt, D_skip):
        L = u.shape[1]
        dt = torch.exp(log_dt)
        A = -torch.exp(log_A_real) + 1j * A_imag
        C = (C_real + 1j * C_imag) * dt[:, None]
        pos = (lambda x, dt: x.to(dt))(torch.arange(L), log_dt.dtype)
        P = torch.exp((A * dt[:, None])[:, :, None] * pos[None, None, :])
        K = 2.0 * torch.einsum("dn,dnl->dl", C, P).real
        L2 = 2 * L
        u_t = (lambda x, *d: x.permute(*d))(u, 0, 2, 1)
        Kf = (lambda x, *a, **k: torch.fft.rfft(x.float(), *a, **k))(K, L2)
        Uf = (lambda x, *a, **k: torch.fft.rfft(x.float(), *a, **k))(u_t, L2)
        y = (lambda x, *a, **k: torch.fft.irfft(x, *a, **k).to(torch.bfloat16))(Uf * Kf[None, :, :], L2)[:, :, :L]
        y = (lambda x, *d: x.permute(*d))(y, 0, 2, 1)
        return y + u * D_skip[None, None, :]

    def _B_ref(x, wqkv, wo):
        B, S, D = x.shape
        H = 32
        Dh = D // H
        qkv = (lambda x, *d: x.permute(*d))((x @ wqkv).reshape(B, S, 3, H, Dh), 2, 0, 3, 1, 4)
        q, k, v = qkv[0], qkv[1], qkv[2]
        scores = torch.einsum("bhqd,bhkd->bhqk", q, k) * (Dh ** -0.5)
        p = _softmax(scores, axis=-1)
        o = torch.einsum("bhqk,bhkd->bhqd", p, v)
        return (lambda x, *d: x.permute(*d))(o, 0, 2, 1, 3).reshape(B, S, D) @ wo

    a = _A_ref(A_u, A_log_A_real, A_A_imag, A_C_real, A_C_imag, A_log_dt, A_D_skip)
    b = _B_ref(B_x, B_wqkv, B_wo)
    return torch.concatenate([a, b], axis=-1)
```

```python
import re

TRANS = ("v_exp_f32","v_log_f32","v_rcp_f32","v_rsq_f32","v_sqrt_f32","v_sin_f32","v_cos_f32",
         "v_exp_f16","v_log_f16","v_rcp_f16","v_rsq_f16","v_sqrt_f16","v_sin_f16","v_cos_f16","v_rcp_iflag_f32")

def parse_regs(tok):
    t = tok.strip()
    t = t.lstrip('-')
    if t.startswith('|') and t.endswith('|'): t = t[1:-1]
    m = re.fullmatch(r'abs\((.*)\)', t)
    if m: t = m.group(1)
    m = re.fullmatch(r'neg\((.*)\)', t)
    if m: t = m.group(1)
    m = re.fullmatch(r'([vsa])(\d+)', t)
    if m: return [(m.group(1), int(m.group(2)))]
    m = re.fullmatch(r'([vsa])\[(\d+):(\d+)\]', t)
    if m: return [(m.group(1), i) for i in range(int(m.group(2)), int(m.group(3))+1)]
    if t in ('vcc',): return [('x','vcc_lo'),('x','vcc_hi')]
    if t in ('vcc_lo','vcc_hi','m0','exec_lo','exec_hi','scc'): return [('x',t)]
    if t == 'exec': return [('x','exec_lo'),('x','exec_hi')]
    return []

class Ins:
    __slots__ = ('text','op','ops','cls','defs','uses','passes','mods','label','srcC','srcAB','wide_store','isnop','nopn','comment')
    def __init__(self, text):
        self.text = text
        body = text.split(';')[0].strip()
        self.label = None
        self.defs = set(); self.uses = set(); self.passes = 0
        self.srcC = set(); self.srcAB = set(); self.wide_store = set()
        self.isnop = False; self.nopn = 1
        if body.endswith(':') and ' ' not in body:
            self.label = body[:-1]; self.op = None; self.cls = 'label'; self.ops = []; self.mods = ''
            return
        if body.startswith('.') or body == '':
            self.op = None; self.cls = 'dir'; self.ops = []; self.mods = ''
            return
        parts = body.split(None, 1)
        op = parts[0]
        for suf in ('_e32','_e64'):
            if op.endswith(suf): op = op[:-len(suf)]
        self.op = op
        rest = parts[1] if len(parts) > 1 else ''
        ops = []; cur = ''; depth = 0
        for ch in rest:
            if ch in '[(': depth += 1
            if ch in '])': depth -= 1
            if ch == ',' and depth == 0: ops.append(cur.strip()); cur = ''
            else: cur += ch
        if cur.strip(): ops.append(cur.strip())
        mods = ''
        if ops:
            last = ops[-1].split()
            if len(last) > 1:
                ops[-1] = last[0]; mods = ' '.join(last[1:])
        self.ops = ops; self.mods = mods
        R = [parse_regs(o) for o in ops]
        def D(*idx):
            for i in idx:
                if i < len(R): self.defs.update(R[i])
        def U(*idx):
            for i in idx:
                if i < len(R): self.uses.update(R[i])
        allidx = list(range(len(R)))
        if op.startswith('v_mfma') or op.startswith('v_smfmac'):
            self.cls = 'mfma'
            D(0); U(1,2,3)
            self.srcAB = set(R[1]) | set(R[2]); self.srcC = set(R[3]) if len(R) > 3 else set()
            if '32x32' in op: self.passes = 8
            elif '16x16x32' in op or '16x16x16' in op: self.passes = 4
            elif '16x16x4_f32' in op: self.passes = 8
            else: raise ValueError('passes? ' + op)
            if '32x32x2_f32' in op: self.passes = 16
        elif op.startswith('v_'):
            self.cls = 'trans' if op in TRANS else 'valu'
            if op.startswith('v_cmp'):
                D(0); U(*allidx[1:])
            elif op in ('v_readlane_b32','v_readfirstlane_b32'):
                D(0); U(*allidx[1:])
            elif op in ('v_add_co_u32','v_sub_co_u32','v_subrev_co_u32','v_addc_co_u32','v_subb_co_u32','v_mad_u64_u32','v_div_scale_f32'):
                D(0,1); U(*allidx[2:])
            elif op.startswith('v_permlane') and 'swap' in op:
                D(0,1); U(0,1)
            elif op in ('v_fmac_f32','v_mac_f32','v_pk_fmac_f16','v_dot2c_f32_bf16','v_writelane_b32','v_fmac_f16'):
                D(0); U(*allidx)
            else:
                D(0); U(*allidx[1:])
                if 'UNUSED_PRESERVE' in mods or 'row_' in mods or 'wave_' in mods or 'quad_perm' in mods or 'op_sel' in mods and op in ('v_cvt_pk_f16_f32',):
                    U(0)
            self.uses.add(('x','exec_lo'))
        elif op.startswith('ds_'):
            self.cls = 'ds'
            if op.startswith('ds_read') or op in ('ds_bpermute_b32','ds_permute_b32','ds_swizzle_b32') or '_rtn_' in op:
                D(0); U(*allidx[1:])
                if 'd16' in op: U(0)
            else:
                U(*allidx)
        elif op.startswith('buffer_') or op.startswith('global_') or op.startswith('flat_'):
            self.cls = 'vmem'
            toks = mods.split()
            if op in ('buffer_inv','buffer_wbl2'):
                pass
            elif 'load' in op:
                if 'lds' in toks or '_lds_' in op:
                    U(*allidx); self.uses.add(('x','m0'))
                else:
                    D(0); U(*allidx[1:])
                    if 'd16' in op: U(0)
            elif 'store' in op:
                U(*allidx)
                if 'x4' in op or 'x3' in op:
                    self.wide_store = set(R[0]) if op.startswith('buffer_') else set(R[1])
            elif 'atomic' in op:
                if 'sc0' in toks: D(0)
                U(*allidx)
        elif op.startswith('s_'):
            self.cls = 'salu'
            if op == 's_nop':
                self.isnop = True; self.nopn = int(ops[0], 0) + 1
            elif op in ('s_waitcnt','s_barrier','s_endpgm','s_branch','s_setprio','s_sleep') or op.startswith('s_cbranch'):
                pass
            elif op.startswith('s_cmp') or op.startswith('s_bitcmp'):
                U(*allidx); self.defs.add(('x','scc'))
            elif op.startswith('s_load') or op.startswith('s_buffer_load') or op in ('s_memtime','s_memrealtime'):
                self.cls = 'smem'; D(0); U(*allidx[1:])
            elif 'saveexec' in op:
                D(0); U(*allidx[1:]); self.defs.update([('x','exec_lo'),('x','exec_hi')])
            else:
                D(0); U(*allidx[1:])
        else:
            raise ValueError('unknown instruction: ' + text)

def states_needed(p, c):
    need = 0
    pv = {r for r in p.defs if r[0] in 'va'}
    ps = {r for r in p.defs if r[0] == 's' or r in (('x','vcc_lo'),('x','vcc_hi'))}
    isvalu_p = p.cls in ('valu','trans')
    isvalu_c = c.cls in ('valu','trans')
    if isvalu_p:
        if c.cls == 'mfma' and pv & c.uses: need = max(need, 2)
        if c.op in ('v_readlane_b32','v_readfirstlane_b32') and pv & c.uses: need = max(need, 1)
        if isvalu_c and (c.op.startswith('v_permlane')) and pv & c.uses: need = max(need, 2)
        if isvalu_c and any(k in c.mods for k in ('row_','wave_','quad_perm','row_bcast')) and pv & c.uses: need = max(need, 2)
        if ps:
            if isvalu_c and ps & c.uses:
                need = max(need, 4 if c.op in ('v_readlane_b32','v_writelane_b32') else 2)
            if c.cls == 'vmem' and ps & c.uses: need = max(need, 5)
            if c.cls in ('salu','smem') and ps & c.uses: need = max(need, 1)
            if c.op and c.op.startswith('s_cbranch_vcc') and (('x','vcc_lo') in ps): need = max(need, 1)
        if p.cls == 'trans' and pv & c.uses and c.cls != 'trans': need = max(need, 1)
        if p.cls == 'trans' and pv & c.uses and c.cls == 'trans': need = max(need, 1)
        if 'dst_sel:WORD' in p.mods and isvalu_c and (pv & (c.uses | c.defs)): need = max(need, 1)
    if p.cls == 'mfma':
        D = p.defs
        if c.cls == 'mfma':
            if D & c.srcAB: need = max(need, {4:8, 8:12, 16:20}[p.passes])
            if D & c.srcC:
                if not (c.srcC == D and c.passes == p.passes): need = max(need, {4:6, 8:10, 16:18}[p.passes])
            elif D & c.defs:
                need = max(need, {4:6, 8:10, 16:18}[p.passes])
        elif isvalu_c or c.cls in ('vmem','ds'):
            if D & (c.uses | c.defs): need = max(need, {4:8, 8:12, 16:20}[p.passes])
        if isvalu_c and (p.srcC & c.defs): need = max(need, {4:3, 8:7, 16:15}[p.passes])
    if p.cls == 'salu' and ('x','m0') in p.defs and ('x','m0') in c.uses and (c.cls in ('vmem','ds') or c.op == 'v_writelane_b32' or c.op=='v_readlane_b32'): need = max(need, 1)
    if p.wide_store and (c.defs & p.wide_store):
        need = max(need, 2 if isvalu_c else 1)
    if p.cls == 'salu' and (('x','exec_lo') in p.defs) and c.cls == 'mfma': need = max(need, 1)
    return need

class Gen:
    def __init__(self):
        self.lines = []
        self.uid = 0
    def __call__(self, text):
        for l in text.split('\n'):
            l = l.strip()
            if l: self.lines.append(l)
    def label(self, name): self.lines.append(name + ':')
    def newlabel(self, base='L'):
        self.uid += 1
        return f'{base}_{self.uid}'
    def comment(self, s): self.lines.append('; ' + s)

def fix_hazards(lines, maxd=22, verbose=False):
    total = 0
    for it in range(50):
        ins = []
        for l in lines:
            if l.startswith(';'):
                i = Ins('.c'); i.text = l; ins.append(i)
            else:
                ins.append(Ins(l))
        labels = {i.label: k for k, i in enumerate(ins) if i.cls == 'label'}
        preds = [[] for _ in ins]
        for k, i in enumerate(ins):
            if k + 1 < len(ins):
                if not (i.op in ('s_branch','s_endpgm')): preds[k+1].append(k)
            if i.op and (i.op == 's_branch' or i.op.startswith('s_cbranch')):
                t = i.ops[0]
                if t in labels: preds[labels[t]].append(k)
                else: raise ValueError('unknown label ' + t)
        inserts = {}
        for k, c in enumerate(ins):
            if c.cls in ('label','dir'): continue
            need = 0
            stack = [(p, 0) for p in preds[k]]
            seen = {}
            while stack:
                p, d = stack.pop()
                if d >= maxd: continue
                if p in seen and seen[p] <= d: continue
                seen[p] = d
                pi = ins[p]
                if pi.cls in ('label','dir'):
                    nd = d
                else:
                    n = states_needed(pi, c)
                    if n > d:
                        need = max(need, n - d)
                        if verbose: print(f'hazard: [{pi.text}] -> [{c.text}] need {n} have {d}')
                    nd = d + (pi.nopn if pi.isnop else 1) + inserts.get(p, 0)
                for q in preds[p]: stack.append((q, nd))
            if need: inserts[k] = need
        if not inserts: break
        out = []
        for k, l in enumerate(lines):
            if k in inserts:
                n = inserts[k]
                while n > 0:
                    m = min(n, 16); out.append(f's_nop {m-1}'); n -= m; total += 1
            out.append(l)
        lines = out
        verbose = False
    return lines, total

class Regs:
    def __init__(self, start, limit, kind='v'):
        self.next = start; self.limit = limit; self.kind = kind; self.names = {}
    def alloc(self, n=1, align=1, name=None):
        a = (self.next + align - 1) // align * align
        if a + n > self.limit: raise RuntimeError(f'out of {self.kind} registers: want {n} at {a}, limit {self.limit}')
        self.next = a + n
        if name: self.names[name] = a
        return a
def vr(a, n=1): return f'v{a}' if n == 1 else f'v[{a}:{a+n-1}]'
def sr(a, n=1): return f's{a}' if n == 1 else f's[{a}:{a+n-1}]'

import subprocess, tempfile, os
def instr_sizes(lines):
    src = '.amdgcn_target "amdgcn-amd-amdhsa--gfx950"\n.text\n' + '\n'.join(l for l in lines if not l.startswith('.p2align')) + '\n'
    d = tempfile.mkdtemp()
    open(d + '/a.s', 'w').write(src)
    r = subprocess.run(['clang', '-x', 'assembler', '-target', 'amdgcn-amd-amdhsa', '-mcpu=gfx950', '-c', d + '/a.s', '-o', d + '/a.o'], capture_output=True, text=True)
    if r.returncode: raise RuntimeError(r.stderr[:3000])
    o = subprocess.run(['llvm-objdump', '-d', '--mcpu=gfx950', d + '/a.o'], capture_output=True, text=True).stdout
    enc = []
    for l in o.splitlines():
        m = re.search(r'// ([0-9A-F]{12}): ((?:[0-9A-F]{8} ?)+)', l)
        if m: enc.append(4 * len(m.group(2).split()))
    sizes = []; k = 0
    for l in lines:
        if l.startswith(';') or l.endswith(':') or l.startswith('.'): sizes.append(0)
        else: sizes.append(enc[k]); k += 1
    assert k == len(enc), (k, len(enc))
    return sizes

PROMOTABLE = ('v_exp_f32', 'v_mov_b32', 'v_mul_f32', 'v_add_f32', 'v_add_u32', 'v_lshlrev_b32', 'v_and_b32', 'v_sin_f32', 'v_cos_f32')
def align8(lines):
    sizes = instr_sizes(lines)
    out = []; inreg = False; off = 0; last_prom = None
    for l, sz in zip(lines, sizes):
        if l == '; @align8':
            inreg = True; off = 0; last_prom = None
            out.append('.p2align 6'); out.append(l); continue
        if l == '; @endalign8':
            inreg = False; out.append(l); continue
        if inreg and sz:
            if sz == 8 and off % 8 == 4:
                if last_prom is not None:
                    op, rest = out[last_prom].split(None, 1)
                    out[last_prom] = op + '_e64 ' + rest
                else:
                    out.append('s_nop 0')
                off += 4
            if sz == 8 or sz > 8: last_prom = None
            if sz == 4 and l.split()[0] in PROMOTABLE and 'e64' not in l and not re.search(r'0x[0-9a-f]{3,}|\b\d{3,}\b', l.split(None,1)[1].replace('v','',1) if False else ''):
                last_prom = len(out)
            off += sz
        if l.endswith(':') and inreg: last_prom = None
        out.append(l)
    return out

def stamp(g, opts, key, i):
    if opts.get('st') == key: g(f's_memtime s[{60+2*i}:{61+2*i}]')
```

```python
from asmlib import *
from layout import *
from k_gemm1 import srd, srd_fin, set_exec, f32bits

SLOT = 8 * REC
NSLOT = 3
NSTAGE = 8
LDS_BYTES = NSLOT * SLOT + 64

def gen_attn(g, done_label, opts={}):
    SKV, SQ, SO = 4, 8, 12
    sWave, sHf, sQs, sH, sC, sT0, sT1, sT2, sStage, sRecG, sM0, sSlotR, sSlotW, sPass, sFlag = range(16, 31)
    g(f's_load_dwordx2 s[{SKV}:{SKV+1}], s[0:1], {P_WS}')
    V = Regs(1, 128)
    vLane = V.alloc(); vKa = V.alloc(); vVa = V.alloc(); vEa = V.alloc(); vDm = V.alloc()
    vT = [V.alloc() for _ in range(5)]
    S = [V.alloc(16, 4), V.alloc(16, 4)]
    O = [V.alloc(16, 4), V.alloc(16, 4)]
    P = [V.alloc(8, 4), V.alloc(8, 4)]
    Qm = [V.alloc(4, 4), V.alloc(4, 4)]
    Qe = [V.alloc(2, 2), V.alloc(2, 2)]
    Km = V.alloc(4, 4); Ke = V.alloc(2, 2)
    Vf = [V.alloc(4, 4), V.alloc(4, 4)]
    g(f'''v_lshrrev_b32 v{vT[0]}, 6, v0
v_and_b32 v{vLane}, 63, v0
v_readfirstlane_b32 s{sWave}, v{vT[0]}
s_and_b32 s{sH}, s2, 31
s_lshr_b32 s{sC}, s2, 5
s_lshr_b32 s{sHf}, s{sWave}, 2
s_and_b32 s{sQs}, s{sWave}, 3''')
    g(f'''s_mul_i32 s{sT0}, s{sHf}, {4*REC}
v_lshlrev_b32 v{vDm}, 4, v{vLane}
v_add_u32 v{vKa}, s{sT0}, v{vDm}
v_and_b32 v{vT[0]}, 31, v{vLane}
v_lshlrev_b32 v{vEa}, 2, v{vT[0]}
v_add_u32 v{vEa}, s{sT0}, v{vEa}
v_min_u32 v{vT[0]}, 18, v{vT[0]}
v_lshrrev_b32 v{vT[1]}, 5, v{vLane}
v_mul_u32_u24 v{vT[1]}, 19, v{vT[1]}
v_add_u32 v{vT[0]}, v{vT[0]}, v{vT[1]}
v_lshlrev_b32 v{vT[0]}, 4, v{vT[0]}
v_add_u32 v{vVa}, s{sT0}, v{vT[0]}''')
    g(f'''s_lshl_b32 s{sT0}, s{sHf}, 5
s_add_u32 s{sT0}, s{sT0}, s{sQs}
s_mul_i32 s{sT0}, s{sT0}, {REC}
s_mul_i32 s{sT1}, s{sH}, {KV_HSTRIDE}
s_add_u32 s{sRecG}, s{sT0}, s{sT1}
s_mul_i32 s{sM0}, s{sWave}, {REC}''')
    g('s_waitcnt lgkmcnt(0)')
    g(f's_mov_b64 s[{SQ}:{SQ+1}], s[{SKV}:{SKV+1}]')
    g(f's_mov_b64 s[{SO}:{SO+1}], s[{SKV}:{SKV+1}]')
    srd_fin(g, SKV, WS_USED); srd_fin(g, SQ, WS_USED); srd_fin(g, SO, WS_USED)
    g(f'''s_lshl_b32 s{sT0}, s{sH}, 6
s_lshl_b32 s{sT1}, s{sC}, 3
s_add_u32 s{sT0}, s{sT0}, s{sT1}
s_lshl_b32 s{sT1}, s{sQs}, 1
s_add_u32 s{sT0}, s{sT0}, s{sT1}
s_mul_i32 s{sT0}, s{sT0}, {REC_K}
s_add_u32 s{sT0}, s{sT0}, {Q_OFF}
s_add_u32 s{sT1}, s{sT0}, {REC_K}
v_and_b32 v{vT[0]}, 31, v{vLane}
v_lshlrev_b32 v{vT[0]}, 2, v{vT[0]}''')
    for i, sb in enumerate((sT0, sT1)):
        g(f'buffer_load_dwordx4 v[{Qm[i]}:{Qm[i]+3}], v{vDm}, s[{SQ}:{SQ+3}], s{sb} offen')
        g(f'buffer_load_dword v{Qe[i]}, v{vT[0]}, s[{SQ}:{SQ+3}], s{sb} offen offset:1024')
    g(f's_mov_b32 s{sPass}, 0')

    def dma(slot_sreg_or_const):
        g(f's_add_u32 m0, s{sM0}, {slot_sreg_or_const}')
        g(f's_add_u32 s{sT2}, s{sRecG}, 1024')
        g(f'buffer_load_dwordx4 v{vDm}, s[{SKV}:{SKV+3}], s{sRecG} offen lds')
        g(f's_add_u32 m0, m0, 1024')
        g(f's_add_u32 s{sRecG}, s{sRecG}, 2048')
        g(f'buffer_load_dwordx4 v{vDm}, s[{SKV}:{SKV+3}], s{sT2} offen lds')
        g(f's_add_u32 m0, m0, 1024')
        set_exec(g, (1 << 20) - 1)
        g(f'buffer_load_dwordx4 v{vDm}, s[{SKV}:{SKV+3}], s{sRecG} offen lds')
        g('s_mov_b64 exec, -1')
        g(f's_add_u32 s{sRecG}, s{sRecG}, {4*REC - 2048}')

    LPASS = g.newlabel('attn_pass')
    g.label(LPASS)
    dma(0); dma(SLOT)
    LQ = g.newlabel('attn_qdone')
    g(f's_cmp_lg_u32 s{sPass}, 0')
    g(f's_cbranch_scc1 {LQ}')
    g('s_waitcnt vmcnt(6)')
    g(f'v_cmp_gt_u32 vcc, 32, v{vLane}')
    for i in range(2):
        g(f'v_cndmask_b32 v{Qe[i]}, 0, v{Qe[i]}, vcc')
        g(f'v_mov_b32 v{Qe[i]+1}, 0')
    g.label(LQ)
    g(f'v_mov_b32 v{Ke+1}, 0x3f803f80')
    for i in range(2):
        for r in range(16): g(f'v_mov_b32 v{O[i]+r}, 0')
    g(f's_mov_b32 s{sSlotR}, 0')
    g(f's_mov_b32 s{sSlotW}, {2*SLOT}')
    g(f's_mov_b32 s{sStage}, 0')
    if opts.get('stamps2'): g('s_memtime s[60:61]')
    g('s_waitcnt vmcnt(3)')
    g('s_barrier')
    if opts.get('stamps2'): g('s_memtime s[62:63]')

    def rdK(ii):
        if opts.get('nolds2'): return []
        return [f'ds_read_b128 v[{Km}:{Km+3}], v{vKa} offset:{ii*REC}', f'ds_read_b32 v{Ke}, v{vEa} offset:{ii*REC + 1024}']
    def rdV(ii):
        if opts.get('nolds2'): return []
        return [f'ds_read_b128 v[{Vf[0]}:{Vf[0]+3}], v{vVa} offset:{ii*REC + REC_K}', f'ds_read_b128 v[{Vf[1]}:{Vf[1]+3}], v{vVa} offset:{ii*REC + REC_K + 608}']
    def qk(x):
        return [f'v_mfma_f32_32x32x16_bf16 v[{S[x]}:{S[x]+15}], v[{Km}:{Km+3}], v[{Qm[x]}:{Qm[x]+3}], 0',
                f'v_mfma_f32_32x32x8_bf16 v[{S[x]}:{S[x]+15}], v[{Ke}:{Ke+1}], v[{Qe[x]}:{Qe[x]+1}], v[{S[x]}:{S[x]+15}]']
    def pv(x):
        return [f'v_mfma_f32_32x32x16_bf16 v[{O[x]}:{O[x]+15}], v[{Vf[0]}:{Vf[0]+3}], v[{P[x]}:{P[x]+3}], v[{O[x]}:{O[x]+15}]',
                f'v_mfma_f32_32x32x16_bf16 v[{O[x]}:{O[x]+15}], v[{Vf[1]}:{Vf[1]+3}], v[{P[x]+4}:{P[x]+7}], v[{O[x]}:{O[x]+15}]']
    def softmax(x):
        out = []
        for q in range(4):
            for r in range(4): out.append(f'v_exp_f32 v{S[x]+4*q+r}, v{S[x]+4*q+r}')
            out.append(f'v_cvt_pk_bf16_f32 v{P[x]+2*q}, v{S[x]+4*q}, v{S[x]+4*q+1}')
            out.append(f'v_cvt_pk_bf16_f32 v{P[x]+2*q+1}, v{S[x]+4*q+2}, v{S[x]+4*q+3}')
        return out
    def phase(x, mf, extra):
        sm = softmax(x)
        for j in range(4):
            for l in extra.get(('pre', j), []): g(l)
            if mf[j]: g(mf[j])
            for l in extra.get(j, []): g(l)
            for l in sm[6*j:6*j+6]: g(l)

    for l in rdK(0): g(l)
    for r in range(8): g(f'v_mov_b32 v{P[1]+r}, 0')
    for r in range(4):
        g(f'v_mov_b32 v{Vf[0]+r}, 0'); g(f'v_mov_b32 v{Vf[1]+r}, 0')
    g('s_waitcnt lgkmcnt(0)')
    for l in qk(0): g(l)
    g('s_nop 11')

    LLOOP = g.newlabel('attn_loop')
    g.label(LLOOP)
    for ii in range(4):
        q = qk(1); p = pv(1)
        ex = {}
        if ii == 3:
            pre = []
            ex[('pre', 0)] = []
            L1 = g.newlabel('attn_nodma')
            seq = ['s_waitcnt vmcnt(0)', 's_barrier']
            ex[('pre', 2)] = seq
        exK = rdK(ii+1) if ii < 3 else None
        if ii < 3:
            ex[1] = exK
            ex[3] = rdV(ii)
            phase(0, [q[0], q[1], p[0], p[1]], ex)
        else:
            sm = softmax(0)
            g(q[0]); [g(l) for l in sm[0:6]]
            g(q[1]); [g(l) for l in sm[6:12]]
            if not opts.get('nobar2'):
                g('s_waitcnt vmcnt(0)')
                g('s_barrier')
            g(f's_add_u32 s{sSlotR}, s{sSlotR}, {SLOT}')
            g(f's_cmp_eq_u32 s{sSlotR}, {NSLOT*SLOT}')
            g(f's_cselect_b32 s{sT0}, {NSLOT*SLOT}, 0')
            g(f's_cselect_b32 s{sSlotR}, 0, s{sSlotR}')
            g(f's_sub_u32 s{sT0}, {SLOT}, s{sT0}')
            g(f'v_add_u32 v{vKa}, s{sT0}, v{vKa}')
            g(f'v_add_u32 v{vEa}, s{sT0}, v{vEa}')
            for l in rdK(0): g(l)
            g(p[0]); [g(l) for l in sm[12:18]]
            g(p[1])
            for l in rdV(3): g(l)
            g(f'v_add_u32 v{vVa}, s{sT0}, v{vVa}')
            L1 = g.newlabel('attn_nodma')
            g(f's_cmp_ge_u32 s{sStage}, {NSTAGE-2}')
            g(f's_cbranch_scc1 {L1}')
            if not opts.get('nodma2'): dma(f's{sSlotW}')
            g(f's_add_u32 s{sSlotW}, s{sSlotW}, {SLOT}')
            g(f's_cmp_eq_u32 s{sSlotW}, {NSLOT*SLOT}')
            g(f's_cselect_b32 s{sSlotW}, 0, s{sSlotW}')
            g.label(L1)
            [g(l) for l in sm[18:24]]
        q = qk(0); p = pv(0)
        phase(1, [q[0], q[1], p[0], p[1]], {('pre', 0): ['s_waitcnt lgkmcnt(2)'], ('pre', 2): ['s_waitcnt lgkmcnt(0)']})
    g(f's_add_u32 s{sStage}, s{sStage}, 1')
    g(f's_cmp_lt_u32 s{sStage}, {NSTAGE}')
    g(f's_cbranch_scc1 {LLOOP}')
    if opts.get('stamps2'): g('s_memtime s[64:65]')
    for l in pv(1): g(l)

    g('s_barrier')
    LH1 = g.newlabel('attn_h1'); LJ = g.newlabel('attn_join')
    g(f's_mul_i32 s{sT0}, s{sQs}, 6144')
    g(f'v_add_u32 v{vT[0]}, s{sT0}, v{vDm}')
    g(f's_cmp_eq_u32 s{sHf}, 1')
    g(f's_cbranch_scc1 {LH1}')
    for k in range(3): g(f'ds_write_b128 v{vT[0]}, v[{O[1]+4*k}:{O[1]+4*k+3}] offset:{3072 + k*1024}')
    g(f's_branch {LJ}')
    g.label(LH1)
    for k in range(3): g(f'ds_write_b128 v{vT[0]}, v[{O[0]+4*k}:{O[0]+4*k+3}] offset:{k*1024}')
    for r in range(12): g(f'v_mov_b32 v{O[0]+r}, v{O[1]+r}')
    g(f'v_add_u32 v{vT[0]}, 3072, v{vT[0]}')
    g.label(LJ)
    g(f'v_mov_b32 v{vT[1]}, {NSLOT*SLOT}')
    g(f'v_mov_b32 v{vT[2]}, 0')
    g(f'ds_write_b32 v{vT[1]}, v{vT[2]}')
    g('s_waitcnt lgkmcnt(0)')
    g('s_barrier')
    for k in range(3): g(f'ds_read_b128 v[{S[0]+4*k}:{S[0]+4*k+3}], v{vT[0]} offset:{k*1024}')
    g('s_waitcnt lgkmcnt(0)')
    for r in range(12): g(f'v_add_f32 v{O[0]+r}, v{O[0]+r}, v{S[0]+r}')
    Of = O[0]
    LST = g.newlabel('attn_store')
    g(f's_cmp_lg_u32 s{sPass}, 0')
    g(f's_cbranch_scc1 {LST}')
    g(f'v_mul_f32 v{vT[3]}, 0, v{Of}')
    for r in range(1, 10): g(f'v_fma_f32 v{vT[3]}, v{Of+r}, 0, v{vT[3]}')
    g(f'v_add_f32 v{vT[3]}, v{vT[3]}, v{Of+10}')
    g(f's_mov_b32 s{sT0}, {f32bits(2.0**-40):#x}')
    g(f's_mov_b32 s{sT1}, {f32bits(2.0**40):#x}')
    g(f'v_cmp_le_f32 vcc, s{sT0}, v{vT[3]}')
    g(f'v_cmp_ge_f32 s[{sT2+11}:{sT2+12}], s{sT1}, v{vT[3]}') if (sT2+11) % 2 == 0 else g(f'v_cmp_ge_f32 s[{sT2+12}:{sT2+13}], s{sT1}, v{vT[3]}')
    sP = sT2+11 if (sT2+11) % 2 == 0 else sT2+12
    g(f's_and_b64 vcc, vcc, s[{sP}:{sP+1}]')
    g(f's_cmp_eq_u64 vcc, -1') if False else None
    g(f's_not_b64 vcc, vcc')
    g(f's_cmp_lg_u64 vcc, 0')
    LOK = g.newlabel('attn_ok')
    g(f's_cbranch_scc0 {LOK}')
    g(f'v_mov_b32 v{vT[2]}, 1')
    g(f'ds_write_b32 v{vT[1]}, v{vT[2]}')
    g.label(LOK)
    g('s_waitcnt lgkmcnt(0)')
    g('s_barrier')
    g(f'ds_read_b32 v{vT[2]}, v{vT[1]}')
    g('s_waitcnt lgkmcnt(0)')
    g(f'v_readfirstlane_b32 s{sFlag}, v{vT[2]}')
    g(f's_cmp_eq_u32 s{sFlag}, 0')
    g(f's_cbranch_scc1 {LST}')

    g(f'v_mov_b32 v{vT[3]}, 0xff7fffff')
    g(f'v_mov_b32 v{vT[4]}, 0xff7fffff')
    for i in range(2): g(f'v_mov_b32 v{Qe[i]+1}, 0')
    g(f's_sub_u32 s{sRecG}, s{sRecG}, {NSTAGE*4*REC}')
    g(f's_sub_u32 s{sT0}, 0, s{sSlotR}')
    g(f's_add_u32 s{sT0}, s{sT0}, 0')
    for a in (vKa, vEa, vVa): g(f'v_add_u32 v{a}, s{sT0}, v{a}')
    g(f's_mov_b32 s{sSlotR}, 0')
    g(f's_mov_b32 s{sStage}, 0')
    LM = g.newlabel('attn_maxloop')
    g.label(LM)
    g('s_barrier')
    dma(0)
    g('s_waitcnt vmcnt(0)')
    g('s_barrier')
    for ii in range(4):
        for l in rdK(ii): g(l)
        g('s_waitcnt lgkmcnt(0)')
        for x in range(2):
            for l in qk(x): g(l)
        for x in range(2):
            for r in range(0, 16, 2):
                g(f'v_max3_f32 v{vT[3+x]}, v{S[x]+r}, v{S[x]+r+1}, v{vT[3+x]}')
    g(f's_add_u32 s{sStage}, s{sStage}, 1')
    g(f's_cmp_lt_u32 s{sStage}, {NSTAGE}')
    g(f's_cbranch_scc1 {LM}')
    for x in range(2):
        g(f'v_mov_b32 v{vT[0]}, v{vT[3+x]}')
        g(f'v_permlane32_swap_b32 v{vT[0]}, v{vT[3+x]}')
        g(f'v_max_f32 v{vT[3+x]}, v{vT[0]}, v{vT[3+x]}')
    g('s_barrier')
    g(f's_lshl_b32 s{sT0}, s{sWave}, 9')
    g(f'v_lshlrev_b32 v{vT[0]}, 2, v{vLane}')
    g(f'v_add_u32 v{vT[0]}, s{sT0}, v{vT[0]}')
    g(f'ds_write_b32 v{vT[0]}, v{vT[3]}')
    g(f'ds_write_b32 v{vT[0]}, v{vT[4]} offset:256')
    g('s_waitcnt lgkmcnt(0)')
    g('s_barrier')
    g(f'v_xor_b32 v{vT[0]}, 2048, v{vT[0]}')
    g(f'ds_read_b32 v{vT[1]}, v{vT[0]}')
    g(f'ds_read_b32 v{vT[2]}, v{vT[0]} offset:256')
    g('s_waitcnt lgkmcnt(0)')
    g(f'v_max_f32 v{vT[3]}, v{vT[3]}, v{vT[1]}')
    g(f'v_max_f32 v{vT[4]}, v{vT[4]}, v{vT[2]}')
    g(f'v_cmp_gt_u32 vcc, 32, v{vLane}')
    for x in range(2):
        m = vT[3+x]
        g(f'v_cvt_pk_bf16_f32 v{vT[0]}, -v{m}, -v{m}')
        g(f'v_lshlrev_b32 v{vT[1]}, 16, v{vT[0]}')
        g(f'v_sub_f32 v{vT[1]}, -v{m}, v{vT[1]}')
        g(f'v_cvt_pk_bf16_f32 v{vT[1]}, v{vT[1]}, v{vT[1]}')
        g(f'v_and_b32 v{vT[0]}, 0xffff, v{vT[0]}')
        g(f'v_lshl_or_b32 v{vT[0]}, v{vT[1]}, 16, v{vT[0]}')
        g(f'v_cndmask_b32 v{Qe[x]+1}, 0, v{vT[0]}, vcc')
    g(f's_sub_u32 s{sRecG}, s{sRecG}, {NSTAGE*4*REC}')
    g(f's_mov_b32 s{sPass}, 1')
    g('s_barrier')
    g(f's_branch {LPASS}')

    g.label(LST)
    g(f'v_rcp_f32 v{vT[0]}, v{Of+10}')
    for r in range(10): g(f'v_mul_f32 v{Of+r}, v{Of+r}, v{vT[0]}')
    A, B = P[0], P[0] + 2
    g(f'v_cvt_pk_bf16_f32 v{A}, v{Of}, v{Of+1}')
    g(f'v_cvt_pk_bf16_f32 v{A+1}, v{Of+2}, v{Of+3}')
    g(f'v_cvt_pk_bf16_f32 v{B}, v{Of+4}, v{Of+5}')
    g(f'v_cvt_pk_bf16_f32 v{B+1}, v{Of+6}, v{Of+7}')
    g(f'v_cvt_pk_bf16_f32 v{P[1]}, v{Of+8}, v{Of+9}')
    g(f'v_permlane32_swap_b32 v{A}, v{B}')
    g(f'v_permlane32_swap_b32 v{A+1}, v{B+1}')
    g(f'''s_lshl_b32 s{sT0}, s{sC}, 8
s_lshl_b32 s{sT1}, s{sQs}, 6
s_add_u32 s{sT0}, s{sT0}, s{sT1}
s_lshl_b32 s{sT1}, s{sHf}, 5
s_add_u32 s{sT0}, s{sT0}, s{sT1}
s_lshl_b32 s{sT1}, s{sH}, 11
s_add_u32 s{sT0}, s{sT0}, s{sT1}
s_lshl_b32 s{sT1}, s{sT0}, 5
s_add_u32 s{sT1}, s{sT1}, {OM_OFF}
s_lshl_b32 s{sT0}, s{sT0}, 2
s_add_u32 s{sT0}, s{sT0}, {OE_OFF}
v_and_b32 v{vT[0]}, 31, v{vLane}
v_lshrrev_b32 v{vT[1]}, 5, v{vLane}
v_lshlrev_b32 v{vT[2]}, 5, v{vT[0]}
v_lshl_add_u32 v{vT[2]}, v{vT[1]}, 4, v{vT[2]}
v_lshlrev_b32 v{vT[0]}, 2, v{vT[0]}''')
    g(f'buffer_store_dwordx4 v[{A}:{A+3}], v{vT[2]}, s[{SO}:{SO+3}], s{sT1} offen')
    set_exec(g, (1 << 32) - 1)
    g(f'buffer_store_dword v{P[1]}, v{vT[0]}, s[{SO}:{SO+3}], s{sT0} offen')
    g('s_mov_b64 exec, -1')
    g(f's_branch {done_label}')
```

```python
from asmlib import *
from layout import *
import struct

def f32bits(x): return struct.unpack('<I', struct.pack('<f', x))[0]

STAGE = 17408
NSLOT = 8
NKS = 18
RSQ = 296
RSV = 264

def srd(g, s, kernarg_off):
    g(f's_load_dwordx2 s[{s}:{s+1}], s[0:1], {kernarg_off}')
def srd_fin(g, s, size):
    g(f's_mov_b32 s{s+2}, {size}')
    g(f's_mov_b32 s{s+3}, 0x20000')

def set_exec(g, mask):
    if mask == (1 << 64) - 1:
        g('s_mov_b64 exec, -1')
    elif mask < (1 << 31):
        g(f's_mov_b64 exec, {mask:#x}')
    else:
        lo = mask & 0xffffffff; hi = mask >> 32
        g('s_mov_b32 exec_lo, -1' if lo == 0xffffffff else f's_mov_b32 exec_lo, {lo:#x}')
        g('s_mov_b32 exec_hi, -1' if hi == 0xffffffff else f's_mov_b32 exec_hi, {hi:#x}')

def gen_qkv_gemm(g, done_label, opts={}):
    SX, SW, SO = 4, 8, 12
    sWave, sTw, sFh, sMt, sNt, sSec = 16, 17, 18, 19, 20, 21
    sKx, sKw, sKc, sMX, sMW, sT0, sT1, sT2, sScale, sGS, sOutBase, sT3 = 22, 23, 24, 25, 26, 27, 28, 29, 30, 31, 32, 33
    srd(g, SX, B_X); srd(g, SW, B_WQKV); srd(g, SO, P_WS)
    V = Regs(1, 128)
    vLane = V.alloc(); vG = V.alloc(); vI = V.alloc()
    vXg = V.alloc(); vWg = V.alloc(); vWg2 = V.alloc()
    vXr = V.alloc(3); vWr = V.alloc(3)
    vEw = V.alloc()
    acc = V.alloc(40, 4)
    fr = [V.alloc(28, 4), V.alloc(28, 4)]
    vT = [V.alloc() for i in range(8)]
    g(f'v_lshrrev_b32 v{vT[0]}, 6, v0')
    g(f'v_and_b32 v{vLane}, 63, v0')
    g(f'v_readfirstlane_b32 s{sWave}, v{vT[0]}')
    g(f'v_lshrrev_b32 v{vG}, 4, v{vLane}')
    g(f'v_and_b32 v{vI}, 15, v{vLane}')
    g(f'''s_and_b32 s{sT0}, s2, 7
s_lshr_b32 s{sT1}, s2, 3
s_and_b32 s{sMt}, s{sT0}, 3
s_lshl_b32 s{sMt}, s{sMt}, 2
s_and_b32 s{sT2}, s{sT1}, 3
s_add_u32 s{sMt}, s{sMt}, s{sT2}
s_lshr_b32 s{sNt}, s{sT0}, 2
s_mul_i32 s{sNt}, s{sNt}, 6
s_lshr_b32 s{sT2}, s{sT1}, 2
s_add_u32 s{sNt}, s{sNt}, s{sT2}
s_lshr_b32 s{sSec}, s{sNt}, 2''')
    g(f'''s_mul_i32 s{sKc}, s{sT1}, 5
s_mul_i32 s{sT2}, s{sT0}, 7
s_add_u32 s{sKc}, s{sKc}, s{sT2}
s_mul_i32 s{sT2}, s{sKc}, 3641
s_lshr_b32 s{sT2}, s{sT2}, 16
s_mul_i32 s{sT2}, s{sT2}, 18
s_sub_u32 s{sKc}, s{sKc}, s{sT2}
s_mul_i32 s{sKc}, s{sKc}, {1 if opts.get('rot') else 0}
s_lshl_b32 s{sKx}, s{sKc}, 6
s_mul_i32 s{sKw}, s{sKc}, {32*3456}
s_and_b32 s{sTw}, s{sWave}, 3
s_lshr_b32 s{sFh}, s{sWave}, 2''')
    g(f'''v_lshrrev_b32 v{vT[0]}, 2, v{vLane}
v_and_b32 v{vT[1]}, 3, v{vLane}
v_lshrrev_b32 v{vT[2]}, 2, v{vT[0]}
v_and_b32 v{vT[2]}, 2, v{vT[2]}
v_xor_b32 v{vT[1]}, v{vT[1]}, v{vT[2]}
s_lshl_b32 s{sT0}, s{sMt}, 7
s_lshl_b32 s{sT1}, s{sWave}, 4
s_add_u32 s{sT0}, s{sT0}, s{sT1}
v_add_u32 v{vT[0]}, s{sT0}, v{vT[0]}
v_mul_u32_u24 v{vT[0]}, 1152, v{vT[0]}
v_lshl_add_u32 v{vXg}, v{vT[1]}, 4, v{vT[0]}''')
    g(f's_mul_i32 s{sT1}, s{sNt}, 288')
    g(f's_lshl_b32 s{sT0}, s{sWave}, 6')
    for (dst, base) in ((vWg, f's{sT0}'), (vWg2, '512')):
        g(f'''v_add_u32 v{vT[0]}, {base}, v{vLane}
v_mul_u32_u24 v{vT[1]}, 3641, v{vT[0]}
v_lshrrev_b32 v{vT[1]}, 16, v{vT[1]}
v_mul_u32_u24 v{vT[2]}, 18, v{vT[1]}
v_sub_u32 v{vT[2]}, v{vT[0]}, v{vT[2]}
v_lshrrev_b32 v{vT[3]}, 4, v{vT[1]}
v_lshlrev_b32 v{vT[3]}, 4, v{vT[3]}
v_and_b32 v{vT[4]}, 4, v{vT[1]}
v_lshl_add_u32 v{vT[3]}, v{vT[4]}, 1, v{vT[3]}
v_and_b32 v{vT[4]}, 8, v{vT[1]}
v_lshrrev_b32 v{vT[4]}, 1, v{vT[4]}
v_add_u32 v{vT[3]}, v{vT[3]}, v{vT[4]}
v_and_b32 v{vT[4]}, 3, v{vT[1]}
v_add_u32 v{vT[3]}, v{vT[3]}, v{vT[4]}
v_mul_u32_u24 v{vT[3]}, 3456, v{vT[3]}
v_lshl_add_u32 v{vT[3]}, v{vT[2]}, 4, v{vT[3]}
v_add_u32 v{dst}, s{sT1}, v{vT[3]}''')
    g(f's_lshl_b32 s{sMX}, s{sWave}, 10')
    g(f's_add_u32 s{sMW}, s{sMX}, 8192')
    g('s_waitcnt lgkmcnt(0)')
    srd_fin(g, SX, L*D*2); srd_fin(g, SW, D*3*D*2); srd_fin(g, SO, WS_USED)

    def dma_stage(s):
        sb = (s % NSLOT) * STAGE
        g(f's_add_u32 m0, s{sMX}, {sb}')
        g(f's_add_u32 s{sKc}, s{sKc}, 1')
        g(f'buffer_load_dwordx4 v{vXg}, s[{SX}:{SX+3}], s{sKx} offen lds')
        g(f's_add_u32 m0, s{sMW}, {sb}')
        g(f's_add_u32 s{sKx}, s{sKx}, 64')
        g(f'buffer_load_dwordx4 v{vWg}, s[{SW}:{SW+3}], s{sKw} offen lds')
        Ls = g.newlabel('nox')
        g(f's_cmp_eq_u32 s{sWave}, {s % 8}')
        g(f's_mov_b32 m0, {sb + 8192 + 8192}')
        g(f's_cbranch_scc0 {Ls}')
        g(f'buffer_load_dwordx4 v{vWg2}, s[{SW}:{SW+3}], s{sKw} offen lds')
        g.label(Ls)
        g(f's_add_u32 s{sKw}, s{sKw}, {32*3456}')
        g(f's_cmp_eq_u32 s{sKc}, {NKS}')
        g(f's_cselect_b32 s{sKc}, 0, s{sKc}')
        g(f's_cselect_b32 s{sKx}, 0, s{sKx}')
        g(f's_cselect_b32 s{sKw}, 0, s{sKw}')
    for s in range(NSLOT): dma_stage(s)

    g(f'''v_lshrrev_b32 v{vT[0]}, 2, v{vI}
v_and_b32 v{vT[0]}, 2, v{vT[0]}
v_xor_b32 v{vT[0]}, v{vT[0]}, v{vG}
v_lshlrev_b32 v{vT[0]}, 4, v{vT[0]}
s_lshl_b32 s{sT0}, s{sTw}, 5
v_add_u32 v{vT[1]}, s{sT0}, v{vI}
v_lshl_add_u32 v{vXr}, v{vT[1]}, 6, v{vT[0]}''')
    g(f'''v_lshrrev_b32 v{vT[0]}, 1, v{vG}
v_lshlrev_b32 v{vT[0]}, 4, v{vT[0]}
v_and_b32 v{vT[1]}, 1, v{vG}
v_lshl_add_u32 v{vT[0]}, v{vT[1]}, 2, v{vT[0]}
v_lshrrev_b32 v{vT[1]}, 2, v{vI}
v_add_u32 v{vT[0]}, v{vT[0]}, v{vT[1]}
v_mul_u32_u24 v{vT[0]}, 288, v{vT[0]}
v_and_b32 v{vT[1]}, 3, v{vI}
v_lshl_add_u32 v{vT[0]}, v{vT[1]}, 3, v{vT[0]}
s_mul_i32 s{sT0}, s{sFh}, 160
v_add_u32 v{vWr}, s{sT0}, v{vT[0]}
v_add_u32 v{vXr+1}, {3*STAGE}, v{vXr}
v_add_u32 v{vXr+2}, {6*STAGE}, v{vXr}
v_add_u32 v{vWr+1}, {3*STAGE}, v{vWr}
v_add_u32 v{vWr+2}, {6*STAGE}, v{vWr}''')
    g(f'''s_cmp_eq_u32 s{sSec}, 0
s_cselect_b32 s{sScale}, {f32bits(QSCALE):#x}, 1.0
s_mov_b32 s{sGS}, {REC}
s_cselect_b32 s{sGS}, {REC_K}, s{sGS}''')
    g(f'''s_and_b32 s{sT0}, s{sNt}, 3
s_lshl_b32 s{sT0}, s{sT0}, 3
s_add_u32 s{sT0}, s{sT0}, s{sWave}
s_lshl_b32 s{sT0}, s{sT0}, 6
s_lshl_b32 s{sT1}, s{sMt}, 2
s_add_u32 s{sT0}, s{sT0}, s{sT1}
s_mul_i32 s{sOutBase}, s{sT0}, s{sGS}
s_cmp_eq_u32 s{sSec}, 0
s_cselect_b32 s{sT1}, {Q_OFF}, {KV_OFF}
s_add_u32 s{sOutBase}, s{sOutBase}, s{sT1}
s_cmp_eq_u32 s{sSec}, 2
s_cselect_b32 s{sT1}, {REC_K}, 0
s_add_u32 s{sOutBase}, s{sOutBase}, s{sT1}''')

    LV = g.newlabel('qkv_v')
    g(f's_cmp_eq_u32 s{sSec}, 2')
    g(f's_cbranch_scc1 {LV}')

    def mainloop(nct, isV, dma_first):
        def reads(s, fs, _):
            sl = s % NSLOT
            hi = sl >= 3
            bank = sl // 3
            sb = (sl % 3) * STAGE
            ax = vXr + bank; aw = vWr + bank
            out = []
            for m in range(2):
                out.append(f'ds_read_b128 v[{fs+4*m}:{fs+4*m+3}], v{ax} offset:{sb + m*1024}')
            for c in range(nct):
                for h in range(2):
                    r = fs + 8 + 4*c + 2*h
                    out.append(f'ds_read_b64_tr_b16 v[{r}:{r+1}], v{aw} offset:{sb + 8192 + h*2304 + c*32}')
            return out
        def mfmas(s, fs):
            out = []
            for c in range(nct):
                for m in range(2):
                    a = acc + (c*2+m)*4
                    xf = f'v[{fs+4*m}:{fs+4*m+3}]'; wf = f'v[{fs+8+4*c}:{fs+8+4*c+3}]'
                    A, B = (xf, wf) if isV else (wf, xf)
                    C = '0' if s == 0 else f'v[{a}:{a+3}]'
                    out.append(f'v_mfma_f32_16x16x32_bf16 v[{a}:{a+3}], {A}, {B}, {C}')
            return out
        if opts.get('stamps'): g('s_memtime s[60:61]')
        issued = NSLOT
        g(f's_waitcnt vmcnt({2*(issued-1)})')
        g('s_barrier')
        if opts.get('stamps'): g('s_memtime s[62:63]')
        for l in reads(0, fr[0], 0): g(l)
        def emit_step(s, rd, dma):
            mf = mfmas(s, fr[s % 2])
            if opts.get('nomfma'): mf = ['s_nop 0']
            if dma and dma_first:
                for t in dma: dma_stage(t)
            k = 0
            for i, m_ in enumerate(mf):
                g(m_)
                for _ in range(2):
                    if k < len(rd): g(rd[k]); k += 1
            while k < len(rd): g(rd[k]); k += 1
            if dma and not dma_first:
                for t in dma: dma_stage(t)
        for s in range(0, NKS, 2):
            need = min(s+2, NKS-1)
            rem = issued - 1 - need
            g(f's_waitcnt vmcnt({2*max(rem,0)}) lgkmcnt(0)')
            g('s_barrier')
            dma = []
            while issued < NKS and issued <= s + NSLOT and len(dma) < 2 and not opts.get('nodma'):
                dma.append(issued); issued += 1
            rd = reads(s+1, fr[(s+1) % 2], 0)
            if opts.get('noread'): rd = []
            emit_step(s, rd, dma[:1])
            g('s_waitcnt lgkmcnt(0)')
            rd = reads(s+2, fr[s % 2], 0) if s + 2 < NKS else []
            if opts.get('noread'): rd = []
            emit_step(s+1, rd, dma[1:])
        if opts.get('stamps'): g('s_memtime s[64:65]')

    LQ1 = g.newlabel('qk_f1'); LQE = g.newlabel('qk_epi')
    g(f'''s_lshl_b32 s{sT0}, s{sTw}, 5
v_add_u32 v{vT[0]}, s{sT0}, v{vI}
v_mul_u32_u24 v{vT[0]}, {RSQ}, v{vT[0]}
v_lshl_add_u32 v{vT[0]}, v{vG}, 3, v{vT[0]}
s_mul_i32 s{sT0}, s{sFh}, 160
v_add_u32 v{vEw}, s{sT0}, v{vT[0]}''')
    g(f's_cmp_eq_u32 s{sFh}, 1')
    g(f's_cbranch_scc1 {LQ1}')
    for (nct, ct0) in ((5, 0), (4, 5)):
        if ct0: g.label(LQ1)
        mainloop(nct, False, ct0 != 0)
        g('s_barrier')
        LNS = g.newlabel('noscale')
        g(f's_cmp_lg_u32 s{sSec}, 0')
        g(f's_cbranch_scc1 {LNS}')
        for a in range(acc, acc + nct*8):
            g(f'v_mul_f32 v{a}, s{sScale}, v{a}')
        g.label(LNS)
        for c in range(nct):
            for m in range(2):
                a = acc + (c*2+m)*4
                g(f'v_cvt_pk_bf16_f32 v{a}, v{a}, v{a+1}')
                g(f'v_cvt_pk_bf16_f32 v{a+1}, v{a+2}, v{a+3}')
                g(f'ds_write_b64 v{vEw}, v[{a}:{a+1}] offset:{c*32 + m*16*RSQ}')
        g(f's_branch {LQE}')
    g.label(LQE)
    vA, vB, vC, vD = vT[0], vT[1], vT[2], vT[3]
    g(f'''v_and_b32 v{vA}, 31, v{vLane}
v_mul_u32_u24 v{vA}, {RSQ}, v{vA}
v_lshrrev_b32 v{vB}, 5, v{vLane}
v_lshl_add_u32 v{vA}, v{vB}, 4, v{vA}
s_mul_i32 s{sT0}, s{sWave}, 36
v_add_u32 v{vA}, s{sT0}, v{vA}
v_lshlrev_b32 v{vB}, 4, v{vLane}''')
    g(f'''v_lshrrev_b32 v{vC}, 3, v{vLane}
v_and_b32 v{vD}, 7, v{vLane}
v_mul_lo_u32 v{vT[4]}, v{vC}, s{sGS}
v_lshl_add_u32 v{vT[4]}, v{vD}, 4, v{vT[4]}
v_add_u32 v{vT[4]}, 1024, v{vT[4]}
v_lshlrev_b32 v{vC}, 5, v{vC}
v_lshl_add_u32 v{vC}, v{vD}, 2, v{vC}
v_mul_u32_u24 v{vC}, {RSQ}, v{vC}
s_add_u32 s{sT0}, s{sT0}, 32
v_add_u32 v{vC}, s{sT0}, v{vC}''')
    g('s_waitcnt lgkmcnt(0)')
    g('s_barrier')
    d0 = fr[0]
    for tau in range(4):
        d = d0 + 4*tau
        g(f'ds_read2_b32 v[{d}:{d+1}], v{vA} offset0:0 offset1:1')
        g(f'ds_read2_b32 v[{d+2}:{d+3}], v{vA} offset0:2 offset1:3')
        if tau < 3: g(f'v_add_u32 v{vA}, {32*RSQ}, v{vA}')
    d = d0 + 16
    g('s_mov_b64 exec, 0xffffffff') if False else set_exec(g, (1 << 32) - 1)
    g(f'ds_read2_b32 v[{d}:{d+1}], v{vC} offset0:0 offset1:{RSQ//4}')
    g(f'ds_read2_b32 v[{d+2}:{d+3}], v{vC} offset0:{2*RSQ//4} offset1:{3*RSQ//4}')
    g('s_mov_b64 exec, -1')
    for tau in range(4):
        d = d0 + 4*tau
        g(f's_waitcnt lgkmcnt({2*(3-tau)+2})')
        g(f'buffer_store_dwordx4 v[{d}:{d+3}], v{vB}, s[{SO}:{SO+3}], s{sOutBase} offen')
        if tau < 3:
            g(f's_add_u32 s{sOutBase}, s{sOutBase}, s{sGS}')
    g(f's_mul_i32 s{sT0}, s{sGS}, 3')
    g(f's_sub_u32 s{sOutBase}, s{sOutBase}, s{sT0}')
    g('s_waitcnt lgkmcnt(0)')
    set_exec(g, (1 << 32) - 1)
    d = d0 + 16
    g(f'buffer_store_dwordx4 v[{d}:{d+3}], v{vT[4]}, s[{SO}:{SO+3}], s{sOutBase} offen')
    g('s_mov_b64 exec, -1')
    g(f's_branch {done_label}')

    g.label(LV)
    LV1 = g.newlabel('v_f1'); LVE = g.newlabel('v_epi')
    g(f'''s_mul_i32 s{sT0}, s{sFh}, 80
v_add_u32 v{vT[0]}, s{sT0}, v{vI}
v_mul_u32_u24 v{vT[0]}, {RSV}, v{vT[0]}
v_lshl_add_u32 v{vT[0]}, v{vG}, 3, v{vT[0]}
s_lshl_b32 s{sT0}, s{sTw}, 6
v_add_u32 v{vEw}, s{sT0}, v{vT[0]}''')
    g(f's_cmp_eq_u32 s{sFh}, 1')
    g(f's_cbranch_scc1 {LV1}')
    for (nct, ct0) in ((5, 0), (4, 5)):
        if ct0: g.label(LV1)
        mainloop(nct, True, ct0 != 0)
        g('s_barrier')
        for c in range(nct):
            for m in range(2):
                a = acc + (c*2+m)*4
                g(f'v_cvt_pk_bf16_f32 v{a}, v{a}, v{a+1}')
                g(f'v_cvt_pk_bf16_f32 v{a+1}, v{a+2}, v{a+3}')
                g(f'ds_write_b64 v{vEw}, v[{a}:{a+1}] offset:{c*16*RSV + m*32}')
        g(f's_branch {LVE}')
    g.label(LVE)
    g(f'''v_mov_b32 v{vT[6]}, 0x3f803f80
v_mov_b32 v{vT[7]}, 0x3f803f80
v_lshlrev_b32 v{vT[0]}, 3, v{vLane}
v_add_u32 v{vT[0]}, {144*RSV}, v{vT[0]}''')
    assert vT[6] % 2 == 0
    set_exec(g, (1 << 32) - 1)
    g(f'ds_write_b64 v{vT[0]}, v[{vT[6]}:{vT[7]}]')
    g('s_mov_b64 exec, -1')
    vA, vA2, vB, vB2 = vT[0], vT[1], vT[2], vT[3]
    g(f's_mul_i32 s{sT0}, s{sWave}, 18')
    for (dst, add) in ((vA, 0), (vA2, 64)):
        g(f'''v_add_u32 v{vT[4]}, {add}, v{vLane}
v_mul_u32_u24 v{vT[5]}, 3450, v{vT[4]}
v_lshrrev_b32 v{vT[5]}, 16, v{vT[5]}
v_mul_u32_u24 v{vT[6]}, 19, v{vT[5]}
v_sub_u32 v{vT[6]}, v{vT[4]}, v{vT[6]}
v_add_u32 v{vT[4]}, s{sT0}, v{vT[6]}
v_cmp_eq_u32 vcc, 18, v{vT[6]}
v_mov_b32 v{vT[6]}, 144
v_lshrrev_b32 v{vT[7]}, 1, v{vT[5]}
v_cndmask_b32 v{vT[4]}, v{vT[4]}, v{vT[6]}, vcc
v_mul_u32_u24 v{vT[4]}, {RSV}, v{vT[4]}
v_lshl_add_u32 v{vT[4]}, v{vT[7]}, 5, v{vT[4]}
v_and_b32 v{vT[5]}, 1, v{vT[5]}
v_lshl_add_u32 v{dst}, v{vT[5]}, 3, v{vT[4]}''')
    g(f'v_lshlrev_b32 v{vB}, 4, v{vLane}')
    g('s_waitcnt lgkmcnt(0)')
    g('s_barrier')
    d0 = fr[0]
    for tau in range(4):
        d = d0 + 8*tau
        g(f'ds_read2_b64 v[{d}:{d+3}], v{vA} offset0:{tau*8} offset1:{tau*8+2}')
        g(f'ds_read2_b64 v[{d+4}:{d+7}], v{vA2} offset0:{tau*8} offset1:{tau*8+2}')
    for tau in range(4):
        d = d0 + 8*tau
        g(f's_waitcnt lgkmcnt({2*(3-tau)})')
        g(f'buffer_store_dwordx4 v[{d}:{d+3}], v{vB}, s[{SO}:{SO+3}], s{sOutBase} offen')
        set_exec(g, (1 << 12) - 1)
        g(f'buffer_store_dwordx4 v[{d+4}:{d+7}], v{vB}, s[{SO}:{SO+3}], s{sOutBase} offen offset:1024')
        g('s_mov_b64 exec, -1')
        if tau < 3: g(f's_add_u32 s{sOutBase}, s{sOutBase}, s{sGS}')
    g(f's_branch {done_label}')
```

```python
from asmlib import *
from layout import *
from k_gemm1 import srd, srd_fin, set_exec

XB = 4096; WROW = 224; WB = 32 * WROW
STAGE = XB + WB
NSLOT = 8
NKS = 18
RSO = 208
LDS_BYTES = NSLOT * STAGE

def gen_outproj(g, done_label, opts={}):
    SWS, SW, SO = 4, 8, 12
    sWave, sTw, sFh, sMt, sNt, sT0, sT1, sT2, sKx, sKw, sMX, sMW = range(16, 28)
    srd(g, SWS, P_WS); srd(g, SW, B_WO); srd(g, SO, P_OUT)
    V = Regs(1, 128)
    vLane = V.alloc(); vG = V.alloc(); vI = V.alloc(); vDm = V.alloc()
    vWm = V.alloc(2); vWe = V.alloc(2)
    vXr = V.alloc(2); vWr = V.alloc(2); vEw = V.alloc()
    vT = [V.alloc() for _ in range(6)]
    acc = V.alloc(12, 4); fr = [V.alloc(16, 4), V.alloc(16, 4)]; xe = V.alloc(8, 4)
    g(f'''v_lshrrev_b32 v{vT[0]}, 6, v0
v_and_b32 v{vLane}, 63, v0
v_readfirstlane_b32 s{sWave}, v{vT[0]}
v_lshrrev_b32 v{vG}, 4, v{vLane}
v_and_b32 v{vI}, 15, v{vLane}
v_lshlrev_b32 v{vDm}, 4, v{vLane}
s_and_b32 s{sT0}, s2, 7
s_lshr_b32 s{sT1}, s2, 3
s_lshl_b32 s{sMt}, s{sT0}, 2
s_and_b32 s{sT2}, s{sT1}, 3
s_add_u32 s{sMt}, s{sMt}, s{sT2}
s_lshr_b32 s{sNt}, s{sT1}, 2
s_and_b32 s{sTw}, s{sWave}, 3
s_lshr_b32 s{sFh}, s{sWave}, 2''')
    for which in range(2):
        if which == 0: g(f's_sub_u32 s{sT0}, s{sWave}, 4')
        else: g(f's_add_u32 s{sT0}, s{sWave}, 4')
        g(f's_and_b32 s{sT0}, s{sT0}, 7')
        g(f's_lshl_b32 s{sT0}, s{sT0}, 6')
        g(f'''v_add_u32 v{vT[0]}, s{sT0}, v{vLane}
v_mul_u32_u24 v{vT[1]}, 4682, v{vT[0]}
v_lshrrev_b32 v{vT[1]}, 16, v{vT[1]}
v_mul_u32_u24 v{vT[2]}, 14, v{vT[1]}
v_sub_u32 v{vT[2]}, v{vT[0]}, v{vT[2]}
v_min_u32 v{vT[2]}, 11, v{vT[2]}
v_and_b32 v{vT[1]}, 31, v{vT[1]}''')
        g(f'''v_lshrrev_b32 v{vT[3]}, 4, v{vT[1]}
v_lshlrev_b32 v{vT[3]}, 1, v{vT[3]}
v_bfe_u32 v{vT[4]}, v{vT[1]}, 2, 1
v_add_u32 v{vT[3]}, v{vT[3]}, v{vT[4]}
v_bfe_u32 v{vT[4]}, v{vT[1]}, 3, 1
v_lshlrev_b32 v{vT[4]}, 2, v{vT[4]}
v_and_b32 v{vT[1]}, 3, v{vT[1]}
v_add_u32 v{vT[4]}, v{vT[4]}, v{vT[1]}''')
        g(f'''v_lshrrev_b32 v{vT[1]}, 1, v{vT[3]}
v_mul_u32_u24 v{vT[1]}, 18, v{vT[1]}
v_and_b32 v{vT[5]}, 1, v{vT[3]}
v_lshl_add_u32 v{vT[1]}, v{vT[5]}, 3, v{vT[1]}
v_add_u32 v{vT[1]}, v{vT[1]}, v{vT[4]}
v_mul_u32_u24 v{vT[1]}, 1152, v{vT[1]}
v_lshl_add_u32 v{vT[1]}, v{vT[2]}, 4, v{vT[1]}
s_mul_i32 s{sT1}, s{sNt}, 192
v_add_u32 v{vWm+which}, s{sT1}, v{vT[1]}''')
        g(f'''v_lshrrev_b32 v{vT[1]}, 1, v{vT[4]}
v_lshl_add_u32 v{vT[1]}, v{vT[3]}, 2, v{vT[1]}
v_mul_u32_u24 v{vT[1]}, 18, v{vT[1]}
v_and_b32 v{vT[5]}, 1, v{vT[4]}
v_add_u32 v{vT[1]}, v{vT[1]}, v{vT[5]}
v_add_u32 v{vT[1]}, 16, v{vT[1]}
v_mul_u32_u24 v{vT[1]}, 1152, v{vT[1]}
v_lshl_add_u32 v{vT[1]}, v{vT[2]}, 4, v{vT[1]}
v_add_u32 v{vWe+which}, s{sT1}, v{vT[1]}''')
    g('s_waitcnt lgkmcnt(0)')
    srd_fin(g, SWS, WS_USED); srd_fin(g, SW, D*D*2); srd_fin(g, SO, L*2*D*2)
    g(f'''s_lshr_b32 s{sT0}, s{sWave}, 1
s_and_b32 s{sT0}, s{sT0}, 1
s_lshl_b32 s{sT0}, s{sT0}, 11
s_lshl_b32 s{sT1}, s{sMt}, 6
s_add_u32 s{sT0}, s{sT0}, s{sT1}
s_and_b32 s{sT1}, s{sWave}, 1
s_lshl_b32 s{sT1}, s{sT1}, 5
s_add_u32 s{sT0}, s{sT0}, s{sT1}
s_lshl_b32 s{sKx}, s{sT0}, 5
s_add_u32 s{sKx}, s{sKx}, {OM_OFF}
s_lshl_b32 s{sMX}, s{sWave}, 10''')
    g(f'''s_lshl_b32 s{sT0}, s{sMt}, 6
s_lshl_b32 s{sT1}, s{sTw}, 4
s_add_u32 s{sT0}, s{sT0}, s{sT1}
v_add_u32 v{vT[0]}, s{sT0}, v{vI}
v_lshlrev_b32 v{vT[0]}, 2, v{vT[0]}
v_lshl_add_u32 v{vT[0]}, v{vG}, 15, v{vT[0]}''')
    for se in range(2):
        for c in range(4):
            g(f's_mov_b32 s{sT0}, {OE_OFF + (16*se + c)*8192}')
            g(f'buffer_load_dword v{xe+4*se+c}, v{vT[0]}, s[{SWS}:{SWS+3}], s{sT0} offen')

    def variant(kind):
        n = {'x2': 2, 'x1': 1, 'w1': 1}[kind]
        def dma(s):
            sb = (s % NSLOT) * STAGE
            main = s < 16
            if kind in ('x2', 'x1') and main:
                g(f's_add_u32 m0, s{sMX}, {sb}')
                g(f's_mov_b32 s{sT0}, s{sKx}')
                g(f'buffer_load_dwordx4 v{vDm}, s[{SWS}:{SWS+3}], s{sT0} offen lds')
                g(f's_add_u32 s{sKx}, s{sKx}, {2*2048*32}')
            if kind in ('x2', 'w1'):
                w = 1 if kind == 'x2' else 0
                g(f's_add_u32 m0, s{sMW}, {sb}')
                so = 36*s*1152 if main else 18*16*(s-16)*1152
                g(f's_mov_b32 s{sT0}, {so}')
                g(f'buffer_load_dwordx4 v{(vWm if main else vWe)+w}, s[{SW}:{SW+3}], s{sT0} offen lds')
        def cnt(s):
            main = s < 16
            c = 0
            if kind in ('x2', 'x1') and main: c += 1
            if kind in ('x2', 'w1'): c += 1
            return c
        if kind == 'x2': g(f's_add_u32 s{sMW}, s{sMX}, {XB + 4096}')
        elif kind == 'w1': g(f's_add_u32 s{sMW}, s{sMX}, {XB - 4096}')
        for s in range(NSLOT): dma(s)
        issued = NSLOT
        def reads(s, fs):
            sl = s % NSLOT; bank = sl // 4; sb = (sl % 4) * STAGE
            out = []
            if s < 16: out.append(f'ds_read_b128 v[{fs}:{fs+3}], v{vXr+bank} offset:{sb}')
            for c in range(3):
                for h in range(2):
                    r = fs + 4 + 4*c + 2*h
                    out.append(f'ds_read_b64_tr_b16 v[{r}:{r+1}], v{vWr+bank} offset:{sb + XB + h*8*WROW + c*32}')
            return out
        def pend(upto):
            return sum(cnt(t) for t in range(upto+1, issued))
        g(f's_waitcnt vmcnt({pend(0)})')
        g('s_barrier')
        for l in reads(0, fr[0]): g(l)
        for s in range(NKS):
            if s + 1 < NKS:
                g(f's_waitcnt vmcnt({pend(s+1)}) lgkmcnt(0)')
                g('s_barrier')
                if issued < NKS: dma(issued); issued += 1
                rd = reads(s+1, fr[(s+1) % 2])
            else:
                g('s_waitcnt lgkmcnt(0)'); rd = []
            fs = fr[s % 2]
            xf = f'v[{fs}:{fs+3}]' if s < 16 else f'v[{xe+4*(s-16)}:{xe+4*(s-16)+3}]'
            k = 0
            for c in range(3):
                C = '0' if s == 0 else f'v[{acc+4*c}:{acc+4*c+3}]'
                g(f'v_mfma_f32_16x16x32_bf16 v[{acc+4*c}:{acc+4*c+3}], v[{fs+4+4*c}:{fs+4+4*c+3}], {xf}, {C}')
                for _ in range(3):
                    if k < len(rd): g(rd[k]); k += 1
        g(f's_branch {LE}')

    g(f'''v_lshrrev_b32 v{vT[0]}, 1, v{vG}
v_lshlrev_b32 v{vT[0]}, 11, v{vT[0]}
s_lshl_b32 s{sT0}, s{sTw}, 4
v_add_u32 v{vT[1]}, s{sT0}, v{vI}
v_lshl_add_u32 v{vT[0]}, v{vT[1]}, 5, v{vT[0]}
v_and_b32 v{vT[1]}, 1, v{vG}
v_lshl_add_u32 v{vXr}, v{vT[1]}, 4, v{vT[0]}
v_add_u32 v{vXr+1}, {4*STAGE}, v{vXr}
v_lshrrev_b32 v{vT[0]}, 1, v{vG}
v_lshlrev_b32 v{vT[0]}, 4, v{vT[0]}
v_and_b32 v{vT[1]}, 1, v{vG}
v_lshl_add_u32 v{vT[0]}, v{vT[1]}, 2, v{vT[0]}
v_lshrrev_b32 v{vT[1]}, 2, v{vI}
v_add_u32 v{vT[0]}, v{vT[0]}, v{vT[1]}
v_mul_u32_u24 v{vT[0]}, {WROW}, v{vT[0]}
v_and_b32 v{vT[1]}, 3, v{vI}
v_lshl_add_u32 v{vT[0]}, v{vT[1]}, 3, v{vT[0]}
s_mul_i32 s{sT0}, s{sFh}, 96
v_add_u32 v{vWr}, s{sT0}, v{vT[0]}
v_add_u32 v{vWr+1}, {4*STAGE}, v{vWr}''')
    g(f'''s_lshl_b32 s{sT0}, s{sTw}, 4
v_add_u32 v{vT[0]}, s{sT0}, v{vI}
v_mul_u32_u24 v{vT[0]}, {RSO}, v{vT[0]}
v_lshl_add_u32 v{vT[0]}, v{vG}, 3, v{vT[0]}
s_mul_i32 s{sT0}, s{sFh}, 96
v_add_u32 v{vEw}, s{sT0}, v{vT[0]}''')
    LE = g.newlabel('op_epi'); LA = g.newlabel('op_x1'); LB = g.newlabel('op_w1')
    g(f's_cmp_ge_u32 s{sWave}, 4')
    g(f's_cbranch_scc1 {LB}')
    g(f's_cmp_eq_u32 s{sWave}, 3')
    g(f's_cbranch_scc1 {LA}')
    variant('x2')
    g.label(LA); variant('x1')
    g.label(LB); variant('w1')
    g.label(LE)
    g('s_barrier')
    for c in range(3):
        a = acc + 4*c
        g(f'v_cvt_pk_bf16_f32 v{a}, v{a}, v{a+1}')
        g(f'v_cvt_pk_bf16_f32 v{a+1}, v{a+2}, v{a+3}')
        g(f'ds_write_b64 v{vEw}, v[{a}:{a+1}] offset:{32*c}')
    for u in range(2):
        g(f'''v_add_u32 v{vT[0]}, {64*u}, v{vLane}
v_mul_u32_u24 v{vT[1]}, 5462, v{vT[0]}
v_lshrrev_b32 v{vT[1]}, 16, v{vT[1]}
v_mul_u32_u24 v{vT[2]}, 12, v{vT[1]}
v_sub_u32 v{vT[2]}, v{vT[0]}, v{vT[2]}
s_lshl_b32 s{sT0}, s{sWave}, 3
v_add_u32 v{vT[1]}, s{sT0}, v{vT[1]}
v_mul_u32_u24 v{vT[3]}, {RSO}, v{vT[1]}
v_lshl_add_u32 v{vT[4+u]}, v{vT[2]}, 4, v{vT[3]}
v_mul_u32_u24 v{vT[3]}, 2304, v{vT[1]}
v_lshl_add_u32 v{xe+u}, v{vT[2]}, 4, v{vT[3]}''')
    g('s_waitcnt lgkmcnt(0)')
    g('s_barrier')
    g(f'ds_read_b128 v[{fr[0]}:{fr[0]+3}], v{vT[4]}')
    g(f'ds_read_b128 v[{fr[0]+4}:{fr[0]+7}], v{vT[5]}')
    g(f'''s_mul_i32 s{sT0}, s{sMt}, {64*2304}
s_mul_i32 s{sT1}, s{sNt}, 192
s_add_u32 s{sT0}, s{sT0}, s{sT1}
s_add_u32 s{sT0}, s{sT0}, 1152''')
    g('s_waitcnt lgkmcnt(0)')
    g(f'buffer_store_dwordx4 v[{fr[0]}:{fr[0]+3}], v{xe}, s[{SO}:{SO+3}], s{sT0} offen')
    set_exec(g, (1 << 32) - 1)
    g(f'buffer_store_dwordx4 v[{fr[0]+4}:{fr[0]+7}], v{xe+1}, s[{SO}:{SO+3}], s{sT0} offen')
    g('s_mov_b64 exec, -1')
    g(f's_branch {done_label}')
```

```python
from asmlib import *
from layout import *
from k_gemm1 import srd, srd_fin, set_exec, f32bits
import math

LOG2E = 1.4426950408889634
ROWB = 272
KG_SCR = 16 * ROWB
KG_WAVE_LDS = 2 * KG_SCR + 1344

def cmul(g, z, a, b, t):
    g(f'v_pk_mul_f32 v[{t}:{t+1}], v[{a}:{a+1}], v[{b}:{b+1}] op_sel_hi:[1,0]')
    g(f'v_pk_fma_f32 v[{z}:{z+1}], v[{a}:{a+1}], v[{b}:{b+1}], v[{t}:{t+1}] op_sel:[1,1,0] op_sel_hi:[0,1,1] neg_lo:[1,0,0]')

def gen_kgen_channel(g, R, sCh, LB):
    SP, SWS = R['SP'], R['SWS']
    vLane, vT = R['vLane'], R['vT']
    sT0, sT1, sT2, sDt, sScale = R['sT0'], R['sT1'], R['sT2'], R['sDt'], R['sScale']
    V = Regs(R['vfree'], 128)
    prm = [V.alloc(2) for _ in range(4)]
    al = V.alloc(2); be = V.alloc(2)
    Cp = [V.alloc(2, 2), V.alloc(2, 2)]
    E1 = V.alloc(2, 2); E8 = V.alloc(2, 2); H1 = V.alloc(2, 2); Hk = V.alloc(2, 2)
    W = [V.alloc(2, 2) for _ in range(8)]
    Z = V.alloc(2, 2); Z2 = V.alloc(2, 2); T = V.alloc(2, 2); pk = V.alloc(2)
    Yf = V.alloc(16, 4); Xf = V.alloc(16, 4); acc = V.alloc(12, 4)
    vWr = V.alloc(); vRd = V.alloc(); vA = [V.alloc() for _ in range(4)]
    ex = V.alloc(12, 4)
    g(f's_lshl_b32 s{sT0}, s{sCh}, 8')
    g(f'v_lshlrev_b32 v{vT[0]}, 1, v{vLane}')
    for p in range(4):
        for hf in range(2):
            g(f'buffer_load_ushort v{prm[p]+hf}, v{vT[0]}, s[{SP[p]}:{SP[p]+3}], s{sT0} offen offset:{128*hf}')
    g(f's_lshl_b32 s{sT1}, s{sCh}, 1')
    g(f'v_mov_b32 v{vT[1]}, 0')
    g(f'buffer_load_ushort v{vT[2]}, v{vT[1]}, s[{R["SDT"]}:{R["SDT"]+3}], s{sT1} offen')
    g(f'v_lshl_add_u32 v{vWr}, v{vLane}, 2, v{LB}')
    g(f'v_and_b32 v{vT[3]}, 15, v{vLane}')
    g(f'v_mul_u32_u24 v{vRd}, {ROWB}, v{vT[3]}')
    g(f'v_lshrrev_b32 v{vT[3]}, 4, v{vLane}')
    g(f'v_lshl_add_u32 v{vRd}, v{vT[3]}, 4, v{vRd}')
    g(f'v_add_u32 v{vRd}, v{vRd}, v{LB}')
    g('s_waitcnt vmcnt(0)')
    g(f'v_lshlrev_b32 v{vT[2]}, 16, v{vT[2]}')
    g(f'v_mul_f32 v{vT[2]}, {f32bits(LOG2E):#x}, v{vT[2]}')
    g(f'v_exp_f32 v{vT[2]}, v{vT[2]}')
    g(f'v_cvt_pk_bf16_f32 v{vT[2]}, v{vT[2]}, v{vT[2]}')
    g(f'v_lshlrev_b32 v{vT[2]}, 16, v{vT[2]}')
    dt = vT[2]
    for hf in range(2):
        lar, aim, cr, ci = prm[0]+hf, prm[1]+hf, prm[2]+hf, prm[3]+hf
        g(f'v_lshlrev_b32 v{lar}, 16, v{lar}')
        g(f'v_mul_f32 v{lar}, {f32bits(LOG2E):#x}, v{lar}')
        g(f'v_exp_f32 v{lar}, v{lar}')
        g(f'v_lshlrev_b32 v{aim}, 16, v{aim}')
        g(f'v_cvt_pk_bf16_f32 v{lar}, v{lar}, v{lar}')
        g(f'v_lshlrev_b32 v{lar}, 16, v{lar}')
        g(f'v_mul_f32 v{lar}, v{lar}, v{dt}')
        g(f'v_mul_f32 v{al+hf}, {f32bits(-LOG2E):#x}, v{lar}')
        g(f'v_mul_f32 v{aim}, v{aim}, v{dt}')
        g(f'v_mul_f32 v{be+hf}, 0.15915494, v{aim}')
        g(f'v_lshlrev_b32 v{cr}, 16, v{cr}')
        g(f'v_lshlrev_b32 v{ci}, 16, v{ci}')
        g(f'v_mul_f32 v{Cp[hf]}, v{cr}, v{dt}')
        g(f'v_mul_f32 v{Cp[hf]+1}, v{ci}, v{dt}')
    m = vT[3]
    g(f'v_max_f32 v{m}, |v{Cp[0]}|, |v{Cp[0]+1}|')
    g(f'v_max3_f32 v{m}, |v{Cp[1]}|, |v{Cp[1]+1}|, v{m}')
    for sh in (1, 2, 4, 8):
        g(f'v_max_f32_dpp v{m}, v{m}, v{m} row_shr:{sh} row_mask:0xf bank_mask:0xf') if False else None
    for sh in (1, 2, 4, 8):
        g(f'v_mov_b32_dpp v{vT[4]}, v{m} row_ror:{sh} row_mask:0xf bank_mask:0xf')
        g(f'v_max_f32 v{m}, v{m}, v{vT[4]}')
    g(f'v_readlane_b32 s{sT0}, v{m}, 0')
    g(f'v_readlane_b32 s{sT1}, v{m}, 16')
    g(f's_max_u32 s{sT0}, s{sT0}, s{sT1}')
    g(f'v_readlane_b32 s{sT1}, v{m}, 32')
    g(f's_max_u32 s{sT0}, s{sT0}, s{sT1}')
    g(f'v_readlane_b32 s{sT1}, v{m}, 48')
    g(f's_max_u32 s{sT0}, s{sT0}, s{sT1}')
    g(f's_lshr_b32 s{sT0}, s{sT0}, 23')
    g(f's_max_u32 s{sT0}, s{sT0}, 2')
    g(f's_min_u32 s{sT0}, s{sT0}, 252')
    g(f's_add_u32 s{sScale}, s{sT0}, 1')
    g(f's_lshl_b32 s{sScale}, s{sScale}, 23')
    g(f's_sub_u32 s{sT0}, 254, s{sT0}')
    g(f's_lshl_b32 s{sT0}, s{sT0}, 23')
    for hf in range(2):
        g(f'v_mul_f32 v{Cp[hf]}, s{sT0}, v{Cp[hf]}')
        g(f'v_mul_f32 v{Cp[hf]+1}, s{sT0}, v{Cp[hf]+1}')

    def cexp(dst, hf, p):
        g(f's_mov_b32 s{sT1}, {f32bits(float(p)):#x}')
        g(f'v_mul_f32 v{T}, s{sT1}, v{al+hf}')
        g(f'v_mul_f32 v{T+1}, s{sT1}, v{be+hf}')
        g(f'v_exp_f32 v{T}, v{T}')
        g(f'v_fract_f32 v{T+1}, v{T+1}')
        g(f'v_cos_f32 v{dst}, v{T+1}')
        g(f'v_sin_f32 v{dst+1}, v{T+1}')
        g(f'v_mul_f32 v{dst}, v{dst}, v{T}')
        g(f'v_mul_f32 v{dst+1}, v{dst+1}, v{T}')
    cnt = [0]
    def put(src, tile_off, row, neg_im=False):
        r = pk + (cnt[0] & 1); cnt[0] += 1
        g(f'v_cvt_pk_f16_f32 v{r}, v{src}, {"-" if neg_im else ""}v{src+1}')
        g(f'ds_write_b32 v{vWr}, v{r} offset:{tile_off + row*ROWB}')
    def mm(tile, hf):
        for k in range(4): g(f'ds_read_b128 v[{Xf+4*k}:{Xf+4*k+3}], v{vRd} offset:{KG_SCR + 64*k}')
        g('s_waitcnt lgkmcnt(0)')
        for k in range(4):
            C = '0' if (hf == 0 and k == 0) else f'v[{acc+4*tile}:{acc+4*tile+3}]'
            g(f'v_mfma_f32_16x16x32_f16 v[{acc+4*tile}:{acc+4*tile+3}], v[{Xf+4*k}:{Xf+4*k+3}], v[{Yf+4*k}:{Yf+4*k+3}], {C}')

    for hf in range(2):
        cexp(E1, hf, 1); cexp(E8, hf, 8); cexp(H1, hf, 128)
        g(f'v_mov_b32 v{Z}, 1.0'); g(f'v_mov_b32 v{Z+1}, 0')
        put(Z, 0, 0, True)
        put(E8, 0, 1, True)
        cur, nxt = E8, Z
        for b in range(2, 16):
            cmul(g, nxt, cur, E8, T)
            put(nxt, 0, b, True)
            cur = nxt; nxt = Z2 if nxt == Z else Z
        g('s_waitcnt lgkmcnt(0)')
        for k in range(4): g(f'ds_read_b128 v[{Yf+4*k}:{Yf+4*k+3}], v{vRd} offset:{64*k}')
        g(f'v_mov_b32 v{W[0]}, v{Cp[hf]}'); g(f'v_mov_b32 v{W[0]+1}, v{Cp[hf]+1}')
        for c in range(1, 8): cmul(g, W[c], W[c-1], E1, T)
        for c in range(8): put(W[c], KG_SCR, c)
        for c in range(8):
            cmul(g, Z, W[c], H1, T); put(Z, KG_SCR, 8 + c)
        g('s_waitcnt lgkmcnt(0)')
        mm(0, hf)
        cmul(g, Hk, H1, H1, T)
        for a in range(2):
            for c in range(4):
                cmul(g, Z, W[2*c], Hk, T); put(Z, KG_SCR, 4*a + c)
            cmul(g, Z2, Hk, H1, T)
            g(f'v_mov_b32 v{Hk}, v{Z2}'); g(f'v_mov_b32 v{Hk+1}, v{Z2+1}')
        for a in range(4):
            for c in range(2):
                cmul(g, Z, W[4*c], Hk, T); put(Z, KG_SCR, 8 + 2*a + c)
            cmul(g, Z2, Hk, H1, T)
            g(f'v_mov_b32 v{Hk}, v{Z2}'); g(f'v_mov_b32 v{Hk+1}, v{Z2+1}')
        g('s_waitcnt lgkmcnt(0)')
        mm(1, hf)
        for a in range(9):
            cmul(g, Z, W[0], Hk, T); put(Z, KG_SCR, a)
            if a < 8:
                cmul(g, Z2, Hk, H1, T)
                g(f'v_mov_b32 v{Hk}, v{Z2}'); g(f'v_mov_b32 v{Hk+1}, v{Z2+1}')
        g('s_waitcnt lgkmcnt(0)')
        mm(2, hf)
    TAB = 2 * KG_SCR
    vb, vq = vT[0], vT[1]
    g(f'v_and_b32 v{vb}, 15, v{vLane}')
    g(f'v_lshrrev_b32 v{vq}, 4, v{vLane}')
    g(f'v_lshrrev_b32 v{vT[2]}, 1, v{vq}')
    g(f'v_lshlrev_b32 v{vT[2]}, 7, v{vT[2]}')
    g(f'v_and_b32 v{vT[3]}, 1, v{vq}')
    g(f'v_lshl_add_u32 v{vT[2]}, v{vT[3]}, 2, v{vT[2]}')
    g(f'v_lshl_add_u32 v{vA[0]}, v{vb}, 3, v{vT[2]}')
    g(f'v_lshlrev_b32 v{vT[2]}, 6, v{vq}')
    g(f'v_lshl_add_u32 v{vT[2]}, v{vb}, 2, v{vT[2]}')
    g(f'v_add_u32 v{vT[2]}, 256, v{vT[2]}')
    g(f'v_lshlrev_b32 v{vT[3]}, 6, v{vq}')
    g(f'v_lshl_add_u32 v{vT[3]}, v{vb}, 1, v{vT[3]}')
    g(f'v_add_u32 v{vT[3]}, {384 - 128}, v{vT[3]}')
    g(f'v_cmp_gt_u32 vcc, 2, v{vq}')
    g(f'v_cndmask_b32 v{vA[1]}, v{vT[3]}, v{vT[2]}, vcc')
    g(f'v_mov_b32 v{vT[2]}, 32'); g(f'v_mov_b32 v{vT[3]}, 2')
    g(f'v_cndmask_b32 v{vA[2]}, v{vT[2]}, v{vT[3]}, vcc')
    g(f'v_lshlrev_b32 v{vT[2]}, 6, v{vq}')
    g(f'v_add_u32 v{vT[2]}, v{vT[2]}, v{vb}')
    g(f'v_add_u32 v{vA[3]}, 512, v{vT[2]}')
    for k in (0, 1, 3):
        g(f'v_lshl_add_u32 v{vA[k]}, v{vA[k]}, 1, v{LB}')
    g(f'v_lshlrev_b32 v{vA[2]}, 1, v{vA[2]}')
    g(f'v_add_u32 v{vA[2]}, v{vA[2]}, v{vA[1]}')
    for t in range(3):
        for r in range(4): g(f'v_mul_f32 v{acc+4*t+r}, s{sScale}, v{acc+4*t+r}')
        g(f'v_cvt_pk_bf16_f32 v{acc+4*t}, v{acc+4*t}, v{acc+4*t+1}')
        g(f'v_cvt_pk_bf16_f32 v{acc+4*t+1}, v{acc+4*t+2}, v{acc+4*t+3}')
    g(f'ds_write_b16 v{vA[0]}, v{acc} offset:{TAB}')
    g(f'ds_write_b16_d16_hi v{vA[0]}, v{acc} offset:{TAB+2}')
    g(f'ds_write_b16 v{vA[0]}, v{acc+1} offset:{TAB+4}')
    g(f'ds_write_b16_d16_hi v{vA[0]}, v{acc+1} offset:{TAB+6}')
    g(f'ds_write_b16 v{vA[1]}, v{acc+4} offset:{TAB}')
    g(f'ds_write_b16_d16_hi v{vA[1]}, v{acc+4} offset:{TAB+2}')
    g(f'ds_write_b16 v{vA[2]}, v{acc+5} offset:{TAB}')
    g(f'ds_write_b16_d16_hi v{vA[2]}, v{acc+5} offset:{TAB+2}')
    set_exec(g, (1 << 48) - 1)
    g(f'ds_write_b16 v{vA[3]}, v{acc+8} offset:{TAB}')
    set_exec(g, (1 << 32) - 1)
    g(f'ds_write_b16_d16_hi v{vA[3]}, v{acc+8} offset:{TAB+32}')
    g(f'ds_write_b16 v{vA[3]}, v{acc+9} offset:{TAB+64}')
    g(f'ds_write_b16_d16_hi v{vA[3]}, v{acc+9} offset:{TAB+96}')
    g('s_mov_b64 exec, -1')
    g('s_waitcnt lgkmcnt(0)')
    sOut = sT2
    g(f's_mul_i32 s{sOut}, s{sCh}, {KIMG_STRIDE}')
    g(f's_add_u32 s{sOut}, s{sOut}, {KIMG_OFF}')
    vO = vT[0]; vM = vT[1]; vAd = vT[2]
    D = ex
    def store_chunks(it):
        g(f'buffer_store_dwordx4 v[{D}:{D+3}], v{vO}, s[{SWS}:{SWS+3}], s{sOut} offen offset:{1024*it}')
        g(f'buffer_store_dwordx4 v[{D+4}:{D+7}], v{vO}, s[{SWS}:{SWS+3}], s{sOut} offen offset:{(KIMG_COPY + 1024*it) & 0xfff}') if False else None
    g(f'v_lshlrev_b32 v{vO}, 4, v{vLane}')
    sOut2 = R['sT3']
    g(f's_add_u32 s{sOut2}, s{sOut}, {KIMG_COPY}')
    def st(it):
        g(f'buffer_store_dwordx4 v[{D}:{D+3}], v{vO}, s[{SWS}:{SWS+3}], s{sOut} offen offset:{1024*it}')
        g(f'buffer_store_dwordx4 v[{D+4}:{D+7}], v{vO}, s[{SWS}:{SWS+3}], s{sOut2} offen offset:{1024*it}')
    LO, HI = 0x01000100, 0x03020302
    def perm(dst, a, b, sel):
        g(f's_mov_b32 s{sT0}, {sel:#x}')
        g(f'v_perm_b32 v{dst}, v{a}, v{b}, s{sT0}')
    for it in range(2):
        g(f'v_sub_u32 v{vM}, {255 - 64*it}, v{vLane}')
        g(f'v_lshl_add_u32 v{vAd}, v{vM}, 1, v{LB}')
        p = D + 8
        g(f'ds_read_u16 v{p}, v{vAd} offset:{TAB + 2*384}')
        g(f'ds_read_u16_d16_hi v{p+1}, v{vAd} offset:{TAB + 2*385}')
        g(f'v_and_b32 v{vM}, 1, v{vM}')
        g(f'v_cmp_eq_u32 vcc, 0, v{vM}')
        g('s_waitcnt lgkmcnt(0)')
        g(f'v_and_b32 v{p+1}, 0xffff0000, v{p+1}')
        g(f'v_or_b32 v{p}, v{p}, v{p+1}')
        perm(D, p, p, HI)
        perm(D+2, p, p, LO); g(f'v_mov_b32 v{D+3}, v{D+2}')
        g(f'v_cndmask_b32 v{p+1}, v{D}, v{D+2}, vcc')
        perm(D+1, p+1, D, 0x05040100)
        g(f'v_mov_b32 v{D+4}, v{D}')
        perm(D+5, D+2, p+1, 0x05040100)
        g(f'v_mov_b32 v{D+6}, v{D+2}'); g(f'v_mov_b32 v{D+7}, v{D+2}')
        st(it)
    g(f'v_sub_u32 v{vM}, 127, v{vLane}')
    g(f'v_lshl_add_u32 v{vAd}, v{vM}, 2, v{LB}')
    p = D + 8
    g(f'ds_read_u16 v{p}, v{vAd} offset:{TAB + 2*256}')
    g(f'ds_read_u16 v{p+2}, v{vAd} offset:{TAB + 2*257}')
    g(f'ds_read_u16 v{p+1}, v{vAd} offset:{TAB + 2*258}')
    g('s_waitcnt lgkmcnt(0)')
    g(f'v_lshl_or_b32 v{p}, v{p+2}, 16, v{p}')
    perm(D, p+1, p+1, LO)
    perm(D+1, p, p, HI)
    perm(D+2, p, p, 0x01000302)
    perm(D+3, p, p, LO)
    perm(D+4, p, p+1, 0x07060100)
    g(f'v_mov_b32 v{D+5}, v{D+1}')
    g(f'v_mov_b32 v{D+6}, v{D+3}')
    g(f'v_mov_b32 v{D+7}, v{D+3}')
    st(2)
    g(f'v_sub_u32 v{vM}, 63, v{vLane}')
    g(f'v_cmp_gt_u32 vcc, 32, v{vLane}')
    oseg1 = [0, 0, 1, 2, 2, 2, 3, 4]
    t1, t0 = vT[3], vT[4]
    g(f'v_lshlrev_b32 v{t1}, 2, v{vM}'); g(f'v_add_u32 v{t1}, 128, v{t1}')
    g(f'v_lshlrev_b32 v{t0}, 3, v{vM}')
    vals = Yf
    tmp = D + 8
    for e in range(9):
        rho = 7 - e
        if e < 8: a1, a0 = oseg1[rho], rho
        else: a1, a0 = 0, -1
        g(f'v_add_u32 v{vAd}, {a1}, v{t1}')
        g(f'v_add_u32 v{tmp}, {a0}, v{t0}')
        g(f'v_cndmask_b32 v{vAd}, v{tmp}, v{vAd}, vcc')
        if e == 8:
            g(f'v_max_i32 v{vAd}, 0, v{vAd}')
            g(f'v_mov_b32 v{tmp}, 255')
            g(f'v_cmp_eq_u32 s[44:45], 31, v{vLane}')
            g(f'v_cndmask_b32 v{vAd}, v{vAd}, v{tmp}, s[44:45]')
        g(f'v_lshl_add_u32 v{vAd}, v{vAd}, 1, v{LB}')
        g(f'ds_read_u16 v{vals+e}, v{vAd} offset:{TAB}')
    g('s_waitcnt lgkmcnt(0)')
    for k in range(4): g(f'v_lshl_or_b32 v{D+k}, v{vals+2*k+1}, 16, v{vals+2*k}')
    vals = vals + 8
    g(f'v_cmp_eq_u32 vcc, 63, v{vLane}')
    g(f'v_cndmask_b32 v{vals}, v{vals}, 0, vcc') if False else None
    g(f'v_mov_b32 v{vals+1}, 0')
    g(f'v_cndmask_b32 v{vals}, v{vals}, v{vals+1}, vcc')
    for k in range(3): g(f'v_alignbit_b32 v{D+4+k}, v{D+k+1}, v{D+k}, 16')
    g(f'v_alignbit_b32 v{D+7}, v{vals}, v{D+3}, 16')
    st(3)
    for k in range(4): g(f'v_mov_b32 v{D+k}, 0')
    set_exec(g, 0xf)
    g(f's_add_u32 s{sOut}, s{sOut}, 4096'); g(f's_add_u32 s{sOut2}, s{sOut2}, 4096')
    g(f'buffer_store_dwordx4 v[{D}:{D+3}], v{vO}, s[{SWS}:{SWS+3}], s{sOut} offen')
    g(f'buffer_store_dwordx4 v[{D}:{D+3}], v{vO}, s[{SWS}:{SWS+3}], s{sOut2} offen')
    g('s_mov_b64 exec, -1')

def transpose_pass(g, SSRC, SDST, sSrc, sDst, src_rowstride, dst_rowstride, vLane, vT, base, coalesced_store):
    A = base; B = base + 32
    for e in range(8):
        off = e * src_rowstride
        if off < 4096:
            g(f'buffer_load_dwordx4 v[{A+4*e}:{A+4*e+3}], v{vT[0]}, s[{SSRC}:{SSRC+3}], s{sSrc} offen offset:{off}')
        else:
            g(f'v_add_u32 v{vT[2]}, {off}, v{vT[0]}')
            g(f'buffer_load_dwordx4 v[{A+4*e}:{A+4*e+3}], v{vT[2]}, s[{SSRC}:{SSRC+3}], s{sSrc} offen')
    g('s_waitcnt vmcnt(0)')
    return A, B

def emit_8x8(g, A, B, sT0, sT1):
    g(f's_mov_b32 s{sT0}, 0x05040100')
    g(f's_mov_b32 s{sT1}, 0x07060302')
    for c in range(8):
        for k in range(4):
            sel = sT0 if c % 2 == 0 else sT1
            g(f'v_perm_b32 v{B+4*c+k}, v{A+4*(2*k+1)+(c>>1)}, v{A+4*(2*k)+(c>>1)}, s{sel}')

def gen_l1_aux(g, done_label, opts={}):
    SP = [4, 8, 12, 16]; SDT, SWS, SU = 20, 24, 28
    sWave, sCh, sT0, sT1, sT2, sT3, sDt, sScale, sA, sB = range(32, 42)
    for s_, ka in zip(SP, (A_LAR, A_AIM, A_CR, A_CI)): srd(g, s_, ka)
    srd(g, SDT, A_LDT); srd(g, SWS, P_WS); srd(g, SU, A_U)
    vLane = 1; LB = 2; vT = [3, 4, 5, 6, 7]
    g(f'v_lshrrev_b32 v{vT[0]}, 6, v0')
    g(f'v_and_b32 v{vLane}, 63, v0')
    g(f'v_readfirstlane_b32 s{sWave}, v{vT[0]}')
    g(f's_mul_i32 s{sT0}, s{sWave}, {KG_WAVE_LDS}')
    g(f'v_mov_b32 v{LB}, s{sT0}')
    g('s_waitcnt lgkmcnt(0)')
    for s_ in SP: srd_fin(g, s_, D*NM*2)
    srd_fin(g, SDT, D*2); srd_fin(g, SWS, WS_USED); srd_fin(g, SU, L*D*2)
    R = dict(SP=SP, SDT=SDT, SWS=SWS, vLane=vLane, vT=vT, sT0=sT0, sT1=sT1, sT2=sT2, sT3=sT3, sDt=sDt, sScale=sScale, vfree=8)
    LNT = g.newlabel('notr')
    g(f's_lshl_b32 s{sCh}, s2, 3')
    g(f's_add_u32 s{sCh}, s{sCh}, s{sWave}')
    g(f's_cmp_ge_u32 s{sCh}, 288')
    g(f's_cbranch_scc1 {LNT}')
    g(f's_and_b32 s{sA}, s{sCh}, 15')
    g(f's_lshr_b32 s{sB}, s{sCh}, 4')
    g(f's_mul_i32 s{sT0}, s{sA}, {128*1152}')
    g(f's_lshl_b32 s{sT1}, s{sB}, 6')
    g(f's_add_u32 s{sT0}, s{sT0}, s{sT1}')
    g(f's_mul_i32 s{sT1}, s{sB}, {32*4096}')
    g(f's_lshl_b32 s{sA}, s{sA}, 8')
    g(f's_add_u32 s{sT1}, s{sT1}, s{sA}')
    g(f's_add_u32 s{sT1}, s{sT1}, {UT_OFF}')
    g(f'v_and_b32 v{vT[2]}, 15, v{vLane}')
    g(f'v_lshrrev_b32 v{vT[3]}, 4, v{vLane}')
    g(f'v_mul_u32_u24 v{vT[0]}, {8*1152}, v{vT[2]}')
    g(f'v_lshl_add_u32 v{vT[0]}, v{vT[3]}, 4, v{vT[0]}')
    g(f'v_lshlrev_b32 v{vT[1]}, 15, v{vT[3]}')
    g(f'v_lshl_add_u32 v{vT[1]}, v{vT[2]}, 4, v{vT[1]}')
    A, B = 8, 40
    for e in range(8):
        if e * 1152 < 4096:
            g(f'buffer_load_dwordx4 v[{A+4*e}:{A+4*e+3}], v{vT[0]}, s[{SU}:{SU+3}], s{sT0} offen offset:{e*1152}')
        else:
            if e == 4: g(f's_add_u32 s{sT0}, s{sT0}, {4*1152}')
            g(f'buffer_load_dwordx4 v[{A+4*e}:{A+4*e+3}], v{vT[0]}, s[{SU}:{SU+3}], s{sT0} offen offset:{(e-4)*1152}')
    g('s_waitcnt vmcnt(0)')
    emit_8x8(g, A, B, sT2, sT3)
    for c in range(8):
        g(f'buffer_store_dwordx4 v[{B+4*c}:{B+4*c+3}], v{vT[1]}, s[{SWS}:{SWS+3}], s{sT1} offen')
        if c < 7: g(f's_add_u32 s{sT1}, s{sT1}, 4096')
    g.label(LNT)
    LK = g.newlabel('kgen_loop')
    g.label(LK)
    gen_kgen_channel(g, R, sCh, LB)
    g(f's_cmp_lg_u32 s{sWave}, 0')
    g(f's_cbranch_scc1 {done_label}')
    g(f's_cmp_ge_u32 s{sCh}, 512')
    g(f's_cbranch_scc1 {done_label}')
    g(f's_add_u32 s{sCh}, s2, 512')
    g(f's_branch {LK}')


CONV_CH = KIMG_STRIDE + 512 + 4096
CONV_LDS = 4 * CONV_CH

def gen_conv(g, done_label, opts={}):
    SWS, SD = 4, 8
    sWave, sCh, sRh, sT0, sT1, sT2, sLB, sD = range(16, 24)
    srd(g, SWS, P_WS); srd(g, SD, A_DSK)
    V = Regs(1, 128)
    vLane = V.alloc(); vT = [V.alloc() for _ in range(4)]
    vF = V.alloc(8); vG = V.alloc(); vDm = V.alloc()
    acc = V.alloc(32, 4); F = V.alloc(32, 4); G = V.alloc(32, 4)
    g(f'''v_lshrrev_b32 v{vT[0]}, 6, v0
v_and_b32 v{vLane}, 63, v0
v_readfirstlane_b32 s{sWave}, v{vT[0]}
s_lshr_b32 s{sT0}, s{sWave}, 1
s_and_b32 s{sRh}, s{sWave}, 1
s_lshl_b32 s{sCh}, s2, 2
s_add_u32 s{sCh}, s{sCh}, s{sT0}
s_mul_i32 s{sLB}, s{sT0}, {CONV_CH}
v_lshlrev_b32 v{vDm}, 4, v{vLane}''')
    g('s_waitcnt lgkmcnt(0)')
    srd_fin(g, SWS, WS_USED); srd_fin(g, SD, D*2)
    g(f's_mul_i32 s{sT0}, s{sCh}, {KIMG_STRIDE}')
    g(f's_mul_i32 s{sT1}, s{sRh}, {KIMG_COPY}')
    g(f's_add_u32 s{sT0}, s{sT0}, s{sT1}')
    g(f's_add_u32 s{sT0}, s{sT0}, {KIMG_OFF}')
    g(f's_add_u32 s{sT1}, s{sT1}, s{sLB}')
    for k in range(5):
        g(f's_add_u32 m0, s{sT1}, {1024*k}')
        if k == 4: set_exec(g, 0xf)
        else: g('s_nop 0')
        g(f'buffer_load_dwordx4 v{vDm}, s[{SWS}:{SWS+3}], s{sT0} offen lds')
        g(f's_add_u32 s{sT0}, s{sT0}, 1024')
    g('s_mov_b64 exec, -1')
    g(f's_lshl_b32 s{sT0}, s{sCh}, 12')
    g(f's_lshl_b32 s{sT1}, s{sRh}, 11')
    g(f's_add_u32 s{sT0}, s{sT0}, s{sT1}')
    g(f's_add_u32 s{sT0}, s{sT0}, {UT_OFF}')
    g(f's_add_u32 s{sT1}, s{sT1}, s{sLB}')
    g(f's_add_u32 s{sT1}, s{sT1}, {KIMG_STRIDE + 512}')
    for k in range(2):
        g(f's_add_u32 m0, s{sT1}, {1024*k}')
        g('s_nop 0')
        g(f'buffer_load_dwordx4 v{vDm}, s[{SWS}:{SWS+3}], s{sT0} offen lds')
        g(f's_add_u32 s{sT0}, s{sT0}, 1024')
    g(f's_lshl_b32 s{sT0}, s{sCh}, 1')
    g(f'v_mov_b32 v{vT[0]}, 0')
    g(f'buffer_load_ushort v{vT[3]}, v{vT[0]}, s[{SD}:{SD+3}], s{sT0} offen')
    for k in range(4): g(f'v_mov_b32 v{F+k}, 0')
    g(f'v_add_u32 v{vT[0]}, s{sLB}, v{vDm}')
    set_exec(g, (1 << 32) - 1)
    g(f'ds_write_b128 v{vT[0]}, v[{F}:{F+3}] offset:{KIMG_STRIDE}')
    g('s_mov_b64 exec, -1')
    g(f'''v_and_b32 v{vT[0]}, 15, v{vLane}
v_lshrrev_b32 v{vT[1]}, 4, v{vLane}
v_lshrrev_b32 v{vT[2]}, 1, v{vT[1]}
v_lshlrev_b32 v{vT[2]}, 4, v{vT[2]}
v_add_u32 v{vT[2]}, v{vT[2]}, v{vT[0]}
v_and_b32 v{vG}, 1, v{vT[1]}
v_lshlrev_b32 v{vG}, 3, v{vG}
v_sub_u32 v{vT[2]}, v{vG}, v{vT[2]}
v_add_u32 v{vT[2]}, 2047, v{vT[2]}
v_and_b32 v{vT[2]}, 0xfffffffe, v{vT[2]}
v_lshlrev_b32 v{vT[2]}, 1, v{vT[2]}
v_and_b32 v{vG}, 1, v{vT[0]}
v_xor_b32 v{vG}, 1, v{vG}
v_mul_u32_u24 v{vG}, {KIMG_COPY}, v{vG}
v_add_u32 v{vT[2]}, v{vT[2]}, v{vG}
s_lshl_b32 s{sT0}, s{sRh}, 8
s_sub_u32 s{sT0}, s{sLB}, s{sT0}
s_sub_u32 s{sT0}, s{sT0}, 192
v_add_u32 v{vF}, s{sT0}, v{vT[2]}''')
    for q in range(1, 8): g(f'v_subrev_u32 v{vF+q}, {512*q}, v{vF}')
    g(f'''v_lshrrev_b32 v{vT[2]}, 1, v{vT[1]}
v_sub_u32 v{vT[2]}, v{vT[0]}, v{vT[2]}
v_lshlrev_b32 v{vT[2]}, 5, v{vT[2]}
v_and_b32 v{vG}, 1, v{vT[1]}
v_lshl_add_u32 v{vT[2]}, v{vG}, 4, v{vT[2]}
s_lshl_b32 s{sT0}, s{sRh}, 8
s_sub_u32 s{sT0}, s{sLB}, s{sT0}
s_add_u32 s{sT0}, s{sT0}, {KIMG_STRIDE + 512 - 192}
v_add_u32 v{vG}, s{sT0}, v{vT[2]}''')
    g('s_waitcnt vmcnt(0) lgkmcnt(0)')
    g('s_barrier')
    def rdF(q, rr):
        o = 16 * (3 - rr)
        return [f'ds_read2_b32 v[{F+4*q}:{F+4*q+1}], v{vF+q} offset0:{o} offset1:{o+1}', f'ds_read2_b32 v[{F+4*q+2}:{F+4*q+3}], v{vF+q} offset0:{o+2} offset1:{o+3}']
    def rdG(sp, rr):
        return [f'ds_read_b128 v[{G+4*sp}:{G+4*sp+3}], v{vG} offset:{512*sp - 64*rr + 192}']
    for q in range(8):
        for l in rdF(q, 0) + rdG(7-q, 0): g(l)
    for rr in range(4):
        g('s_waitcnt lgkmcnt(0)')
        for q in range(8):
            for t in range(7, q-1, -1):
                sp = t - q
                C = '0' if (rr == 0 and q == 0) else f'v[{acc+4*t}:{acc+4*t+3}]'
                g(f'v_mfma_f32_16x16x32_bf16 v[{acc+4*t}:{acc+4*t+3}], v[{F+4*q}:{F+4*q+3}], v[{G+4*sp}:{G+4*sp+3}], {C}')
            if rr < 3:
                for l in rdF(q, rr+1) + rdG(7-q, rr+1): g(l)
    g('s_barrier')
    g(f'v_add_u32 v{vT[0]}, s{sLB}, v{vDm}')
    L1 = g.newlabel('conv_h1'); LJ = g.newlabel('conv_j')
    g(f's_cmp_eq_u32 s{sRh}, 1')
    g(f's_cbranch_scc1 {L1}')
    for k in range(4): g(f'ds_write_b128 v{vT[0]}, v[{acc+16+4*k}:{acc+16+4*k+3}] offset:{4096 + 1024*k}')
    g(f's_branch {LJ}')
    g.label(L1)
    for k in range(4): g(f'ds_write_b128 v{vT[0]}, v[{acc+4*k}:{acc+4*k+3}] offset:{1024*k}')
    for r in range(16): g(f'v_mov_b32 v{acc+r}, v{acc+16+r}')
    g(f'v_add_u32 v{vT[0]}, 4096, v{vT[0]}')
    g.label(LJ)
    g('s_waitcnt lgkmcnt(0)')
    g('s_barrier')
    for k in range(4): g(f'ds_read_b128 v[{F+4*k}:{F+4*k+3}], v{vT[0]} offset:{1024*k}')
    g(f'''v_and_b32 v{vT[1]}, 15, v{vLane}
v_lshrrev_b32 v{vT[2]}, 4, v{vLane}
v_lshlrev_b32 v{vT[1]}, 5, v{vT[1]}
v_lshl_add_u32 v{vT[1]}, v{vT[2]}, 3, v{vT[1]}
s_lshl_b32 s{sT0}, s{sRh}, 11
v_add_u32 v{vT[1]}, s{sT0}, v{vT[1]}
s_add_u32 s{sT1}, s{sLB}, {KIMG_STRIDE + 512}
v_add_u32 v{vT[2]}, s{sT1}, v{vT[1]}''')
    for k in range(4): g(f'ds_read_b64 v[{G+2*k}:{G+2*k+1}], v{vT[2]} offset:{512*k}')
    g(f'v_lshlrev_b32 v{vT[3]}, 16, v{vT[3]}')
    g('s_waitcnt lgkmcnt(0)')
    for k in range(4):
        for r in range(4):
            a = acc + 4*k + r
            g(f'v_add_f32 v{a}, v{a}, v{F+4*k+r}')
            u = G + 8 + r
            if r % 2 == 0: g(f'v_lshlrev_b32 v{u}, 16, v{G+2*k+r//2}')
            else: g(f'v_and_b32 v{u}, 0xffff0000, v{G+2*k+r//2}')
            g(f'v_fmac_f32 v{a}, v{u}, v{vT[3]}')
        g(f'v_cvt_pk_bf16_f32 v{acc+4*k}, v{acc+4*k}, v{acc+4*k+1}')
        g(f'v_cvt_pk_bf16_f32 v{acc+4*k+1}, v{acc+4*k+2}, v{acc+4*k+3}')
    g(f's_lshl_b32 s{sT0}, s{sCh}, 12')
    g(f's_add_u32 s{sT0}, s{sT0}, {YT_OFF}')
    for k in range(4):
        g(f'buffer_store_dwordx2 v[{acc+4*k}:{acc+4*k+1}], v{vT[1]}, s[{SWS}:{SWS+3}], s{sT0} offen offset:{512*k}')
    g(f's_branch {done_label}')

def gen_backtr(g, done_label, opts={}):
    SWS, SO = 4, 8
    sWave, sP, sA, sB, sT0, sT1, sT2, sT3 = range(16, 24)
    srd(g, SWS, P_WS); srd(g, SO, P_OUT)
    vLane = 1; vT = [2, 3, 4, 5]
    g(f'''v_lshrrev_b32 v{vT[0]}, 6, v0
v_and_b32 v{vLane}, 63, v0
v_readfirstlane_b32 s{sWave}, v{vT[0]}
s_lshl_b32 s{sP}, s2, 3
s_add_u32 s{sP}, s{sP}, s{sWave}
s_and_b32 s{sA}, s{sP}, 15
s_lshr_b32 s{sB}, s{sP}, 4
s_mul_i32 s{sT0}, s{sB}, {32*4096}
s_lshl_b32 s{sT1}, s{sA}, 8
s_add_u32 s{sT0}, s{sT0}, s{sT1}
s_add_u32 s{sT0}, s{sT0}, {YT_OFF}
s_mul_i32 s{sT1}, s{sA}, {128*2304}
s_lshl_b32 s{sB}, s{sB}, 6
s_add_u32 s{sT1}, s{sT1}, s{sB}
v_lshrrev_b32 v{vT[2]}, 2, v{vLane}
v_and_b32 v{vT[3]}, 3, v{vLane}
v_lshlrev_b32 v{vT[0]}, 15, v{vT[3]}
v_lshl_add_u32 v{vT[0]}, v{vT[2]}, 4, v{vT[0]}
v_mul_u32_u24 v{vT[1]}, {8*2304}, v{vT[2]}
v_lshl_add_u32 v{vT[1]}, v{vT[3]}, 4, v{vT[1]}''')
    g('s_waitcnt lgkmcnt(0)')
    srd_fin(g, SWS, WS_USED); srd_fin(g, SO, L*2*D*2)
    A, B = 8, 40
    for c in range(8):
        g(f'buffer_load_dwordx4 v[{A+4*c}:{A+4*c+3}], v{vT[0]}, s[{SWS}:{SWS+3}], s{sT0} offen')
        if c < 7: g(f's_add_u32 s{sT0}, s{sT0}, 4096')
    g('s_waitcnt vmcnt(0)')
    emit_8x8(g, A, B, sT2, sT3)
    for e in range(8):
        g(f'buffer_store_dwordx4 v[{B+4*e}:{B+4*e+3}], v{vT[1]}, s[{SO}:{SO+3}], s{sT1} offen')
        if e < 7: g(f's_add_u32 s{sT1}, s{sT1}, 2304')
    g(f's_branch {done_label}')
```

```python
L = 2048; D = 576; H = 32; DH = 18; NM = 128
REC_K = 1152
REC_V = 1216
REC = REC_K + REC_V
KV_HSTRIDE = 64 * REC
KV_OFF = 0
Q_OFF = 5 * 1024 * 1024
Q_HSTRIDE = 64 * REC_K
OM_OFF = 8 * 1024 * 1024
OE_OFF = OM_OFF + 32 * 2048 * 32
KIMG_OFF = 11 * 1024 * 1024
KIMG_COPY = 4160
KIMG_STRIDE = 2 * KIMG_COPY
UT_OFF = 16 * 1024 * 1024
YT_OFF = 19 * 1024 * 1024
WS_USED = 22 * 1024 * 1024
A_U, A_LAR, A_AIM, A_CR, A_CI, A_LDT, A_DSK, B_X, B_WQKV, B_WO, P_OUT, P_DBG, P_WS = [8*i for i in range(13)]
QSCALE = (18 ** -0.5) * 1.4426950408889634
```

```python
import sys
from asmlib import *
from layout import *
import k_gemm1, k_attn, k_ssm, k_gemm3

HEADER = open('concat_heads__ssm_conv_s4d__mha_block__prompt.s.ref').read().split('; Override launch')[0]

def kernel_text(name, g, vgpr, sgpr=102):
    lines, n = fix_hazards(g.lines)
    lines = align8(lines)
    out = [f'.globl {name}', '.p2align 8', f'.type {name},@function', f'{name}:']
    for l in lines:
        out.append(l if (l.endswith(':') or l.startswith(';') or l.startswith('.')) else '    ' + l)
    txt = '\n'.join(out) + '\n'
    kd = f'''.section .rodata,"a"
.p2align 6
.amdhsa_kernel {name}
  .amdhsa_next_free_vgpr {vgpr}
  .amdhsa_next_free_sgpr {sgpr}
  .amdhsa_accum_offset {(vgpr+3)//4*4}
  .amdhsa_group_segment_fixed_size 0
  .amdhsa_kernarg_size 104
  .amdhsa_user_sgpr_count 2
  .amdhsa_user_sgpr_kernarg_segment_ptr 1
  .amdhsa_system_sgpr_workgroup_id_x 1
.end_amdhsa_kernel
.text
'''
    return txt, kd, n

PROF_OFF = 200 * 1024 * 1024
def prof_begin(g, opts):
    if opts.get('prof'):
        g('s_mov_b32 s100, s2')
        g('s_memrealtime s[96:97]')
        g('s_memtime s[98:99]')
def prof_end(g, opts, launch_idx):
    if not opts.get('prof'): return
    g('s_waitcnt vmcnt(0) lgkmcnt(0)')
    g('s_memrealtime s[92:93]')
    g('s_memtime s[94:95]')
    g(f's_load_dwordx2 s[90:91], s[0:1], {P_WS}')
    g('s_waitcnt lgkmcnt(0)')
    g(f's_add_u32 s90, s90, {PROF_OFF + launch_idx*(1<<20)}')
    g('s_addc_u32 s91, s91, 0')
    g('s_sub_u32 s94, s94, s98')
    g('v_lshrrev_b32 v1, 6, v0')
    g('s_lshl_b32 s88, s100, 4')
    g('v_add_u32 v1, s88, v1')
    g('v_lshlrev_b32 v1, 4, v1')
    g('v_mov_b32 v4, s96')
    g('v_mov_b32 v5, s92')
    g('v_mov_b32 v6, s94')
    g('v_mov_b32 v7, 1')
    if (opts.get('stamps') and launch_idx == 0) or (opts.get('stamps2') and launch_idx == 1):
        g('s_sub_u32 s60, s60, s98'); g('s_sub_u32 s62, s62, s98'); g('s_sub_u32 s64, s64, s98')
        g('v_mov_b32 v4, s60'); g('v_mov_b32 v5, s62'); g('v_mov_b32 v6, s64'); g('v_mov_b32 v7, s94')
    g('v_and_b32 v2, 63, v0')
    g('v_cmp_eq_u32 vcc, 0, v2')
    g('s_and_saveexec_b64 s[88:89], vcc')
    L = g.newlabel('prof')
    g(f's_cbranch_execz {L}')
    g('global_store_dwordx4 v1, v[4:7], s[90:91]')
    g.label(L)
    g('s_waitcnt vmcnt(0)')

def make_launch(name, idx, roles, opts, uid0):
    g = Gen(); g.uid = uid0
    total = sum(c for c, _ in roles)
    g(f's_cmp_ge_u32 s2, {total}')
    g(f's_cbranch_scc1 {name}_exit')
    prof_begin(g, opts)
    base = 0; labels = []
    for i, (c, fn) in enumerate(roles):
        labels.append(f'{name}_role{i}')
    base = 0
    for i, (c, fn) in enumerate(roles):
        base += c
        if i < len(roles) - 1:
            g(f's_cmp_lt_u32 s2, {base}')
            g(f's_cbranch_scc1 {labels[i]}')
    order = [len(roles) - 1] + list(range(len(roles) - 1))
    for i in order:
        c, fn = roles[i]
        b = sum(cc for cc, _ in roles[:i])
        g.label(labels[i])
        if b: g(f's_sub_u32 s2, s2, {b}')
        fn(g, f'{name}_done', opts)
    g.label(f'{name}_done')
    prof_end(g, opts, idx)
    g.label(f'{name}_exit')
    g('s_endpgm')
    return g, total

def build(opts):
    launches = []; texts = []; kds = []
    specs = [
        ('k1_kernel', [(192, k_gemm1.gen_qkv_gemm), (64, k_ssm.gen_l1_aux)], k_gemm1.NSLOT*k_gemm1.STAGE, 128),
        ('k2_kernel', [(256, k_attn.gen_attn), (144, k_ssm.gen_conv)], max(k_attn.LDS_BYTES, k_ssm.CONV_LDS), 128),
        ('k3_kernel', [(192, k_gemm3.gen_outproj), (36, k_ssm.gen_backtr)], k_gemm3.LDS_BYTES, 128),
    ]
    for idx, (name, roles, lds, vg) in enumerate(specs):
        g, total = make_launch(name[:2], idx, roles, opts, 10000*idx)
        t, kd, n = kernel_text(name, g, vg)
        print(name, 'nops inserted', n, 'lines', len(g.lines), file=sys.stderr)
        launches.append((name, total, 512, lds)); texts.append(t); kds.append(kd)
    hdr = HEADER
    for (k, grid, blk, lds) in launches:
        hdr += f'; @launch kernel={k} grid=({grid},1,1) block=({blk},1,1) lds={lds}\n'
    src = hdr + '.amdgcn_target "amdgcn-amd-amdhsa--gfx950"\n.text\n'
    for t, kd in zip(texts, kds):
        src += t + kd
    return src

if __name__ == '__main__':
    out = sys.argv[1] if len(sys.argv) > 1 else 'out.s'
    opts = {a: True for a in sys.argv[2:]}
    open(out, 'w').write(build(opts))
```

```python
from asmlib import *
from layout import *
from k_gemm1 import srd, srd_fin, set_exec, f32bits

RECL = 3072
SLOT = 8 * RECL
NSTAGE = 8
XCH = 2 * SLOT
LDS_BYTES = XCH + 8 * 3072

def gen_attn(g, done_label, opts={}):
    SKV = 4
    sWave, sHf, sQs, sH, sC, sT0, sT1, sT2, sIt, sRecG, sM0, sM1, sKVh = range(16, 29)
    g(f's_load_dwordx2 s[{SKV}:{SKV+1}], s[0:1], {P_WS}')
    V = Regs(1, 128)
    vLane = V.alloc(); vKa = V.alloc(); vVa = V.alloc(); vEa = V.alloc(); vDm = V.alloc()
    vT = [V.alloc() for _ in range(2)]
    S = [V.alloc(16, 4), V.alloc(16, 4)]
    O = [V.alloc(16, 4), V.alloc(16, 4)]
    P = [V.alloc(8, 4), V.alloc(8, 4)]
    Qm = [V.alloc(4, 4), V.alloc(4, 4)]
    Qe = [V.alloc(2, 2), V.alloc(2, 2)]
    Km = V.alloc(4, 4); Ke = V.alloc(2, 2)
    Vf = [[V.alloc(4, 2), V.alloc(4, 2)], [V.alloc(4, 2), V.alloc(4, 2)]]
    g(f'''v_lshrrev_b32 v{vT[0]}, 6, v0
v_and_b32 v{vLane}, 63, v0
v_readfirstlane_b32 s{sWave}, v{vT[0]}
s_and_b32 s{sH}, s2, 31
s_lshr_b32 s{sC}, s2, 5
v_lshlrev_b32 v{vDm}, 4, v{vLane}
s_lshr_b32 s{sHf}, s{sWave}, 2
s_and_b32 s{sQs}, s{sWave}, 3''')
    g(f'''s_lshl_b32 s{sT0}, s{sHf}, 5
s_add_u32 s{sT0}, s{sT0}, s{sQs}
s_mul_i32 s{sT0}, s{sT0}, {REC}
s_mul_i32 s{sKVh}, s{sH}, {KV_HSTRIDE}
s_add_u32 s{sRecG}, s{sT0}, s{sKVh}
s_mul_i32 s{sM0}, s{sWave}, {RECL}
s_add_u32 s{sM1}, s{sM0}, {SLOT}''')
    g(f'''s_lshl_b32 s{sT0}, s{sH}, 6
s_lshl_b32 s{sT1}, s{sC}, 3
s_add_u32 s{sT0}, s{sT0}, s{sT1}
s_lshl_b32 s{sT1}, s{sQs}, 1
s_add_u32 s{sT0}, s{sT0}, s{sT1}
s_mul_i32 s{sT0}, s{sT0}, {REC_K}
s_add_u32 s{sT0}, s{sT0}, {Q_OFF}
s_add_u32 s{sT1}, s{sT0}, {REC_K}
v_and_b32 v{vT[0]}, 31, v{vLane}
v_lshlrev_b32 v{vT[0]}, 2, v{vT[0]}''')
    g('s_waitcnt lgkmcnt(0)')
    srd_fin(g, SKV, WS_USED)

    def dma(m0reg):
        g(f's_mov_b32 m0, s{m0reg}')
        g(f's_add_u32 s{sT2}, s{sRecG}, 0')
        g(f'buffer_load_dwordx4 v{vDm}, s[{SKV}:{SKV+3}], s{sT2} offen lds')
        g(f'buffer_load_dwordx4 v{vDm}, s[{SKV}:{SKV+3}], s{sT2} offen offset:1024 lds')
        g(f'buffer_load_dwordx4 v{vDm}, s[{SKV}:{SKV+3}], s{sT2} offen offset:2048 lds')
        g(f's_add_u32 s{sRecG}, s{sRecG}, {4*REC}')
    dma(sM0)
    for i, sb in enumerate((sT0, sT1)):
        g(f'buffer_load_dwordx4 v[{Qm[i]}:{Qm[i]+3}], v{vDm}, s[{SKV}:{SKV+3}], s{sb} offen')
        g(f'buffer_load_dword v{Qe[i]}, v{vT[0]}, s[{SKV}:{SKV+3}], s{sb} offen offset:1024')
    dma(sM1)
    g(f'''s_mul_i32 s{sT0}, s{sHf}, {4*RECL}
v_add_u32 v{vKa}, s{sT0}, v{vDm}
v_and_b32 v{vT[0]}, 31, v{vLane}
v_lshlrev_b32 v{vEa}, 2, v{vT[0]}
v_add_u32 v{vEa}, s{sT0}, v{vEa}
v_min_u32 v{vT[0]}, 18, v{vT[0]}
v_lshrrev_b32 v{vT[1]}, 5, v{vLane}
v_mul_u32_u24 v{vT[1]}, 19, v{vT[1]}
v_add_u32 v{vT[0]}, v{vT[0]}, v{vT[1]}
v_lshlrev_b32 v{vT[0]}, 4, v{vT[0]}
v_add_u32 v{vVa}, s{sT0}, v{vT[0]}''')
    g(f'v_mov_b32 v{Ke+1}, 0x3f803f80')
    for i in range(2):
        for r in range(16): g(f'v_mov_b32 v{O[i]+r}, 0')
    for r in range(8): g(f'v_mov_b32 v{P[1]+r}, 0')
    for r in range(4):
        g(f'v_mov_b32 v{Vf[1][0]+r}, 0'); g(f'v_mov_b32 v{Vf[1][1]+r}, 0')
    g(f's_mov_b32 s{sIt}, 0')
    g(f'v_cmp_gt_u32 vcc, 32, v{vLane}')
    g('s_waitcnt vmcnt(3)')
    for i in range(2):
        g(f'v_cndmask_b32 v{Qe[i]}, 0, v{Qe[i]}, vcc')
        g(f'v_mov_b32 v{Qe[i]+1}, 0')
    if opts.get('stamps2'): g('s_memtime s[60:61]')
    g('s_barrier')
    if opts.get('stamps2'): g('s_memtime s[62:63]')

    def base(n):
        n = n % 8
        return (n // 4) * SLOT + (n % 4) * RECL
    def rdK(n):
        return [f'ds_read_b128 v[{Km}:{Km+3}], v{vKa} offset:{base(n)}', f'ds_read_b32 v{Ke}, v{vEa} offset:{base(n) + 1024}']
    def rdV(n):
        b = Vf[n % 2]
        return [f'ds_read_b128 v[{b[0]}:{b[0]+3}], v{vVa} offset:{base(n) + REC_K}', f'ds_read_b128 v[{b[1]}:{b[1]+3}], v{vVa} offset:{base(n) + REC_K + 608}']
    def qk(x):
        return [f'v_mfma_f32_32x32x16_bf16 v[{S[x]}:{S[x]+15}], v[{Km}:{Km+3}], v[{Qm[x]}:{Qm[x]+3}], 0',
                f'v_mfma_f32_32x32x8_bf16 v[{S[x]}:{S[x]+15}], v[{Ke}:{Ke+1}], v[{Qe[x]}:{Qe[x]+1}], v[{S[x]}:{S[x]+15}]']
    def pv(x, n):
        b = Vf[n % 2]
        return [f'v_mfma_f32_32x32x16_bf16 v[{O[x]}:{O[x]+15}], v[{b[0]}:{b[0]+3}], v[{P[x]}:{P[x]+3}], v[{O[x]}:{O[x]+15}]',
                f'v_mfma_f32_32x32x16_bf16 v[{O[x]}:{O[x]+15}], v[{b[1]}:{b[1]+3}], v[{P[x]+4}:{P[x]+7}], v[{O[x]}:{O[x]+15}]']
    def softmax(x):
        out = []
        for q in range(4):
            grp = [f'v_exp_f32 v{S[x]+4*q+r}, v{S[x]+4*q+r}' for r in range(4)]
            grp.append(f'v_cvt_pk_bf16_f32 v{P[x]+2*q}, v{S[x]+4*q}, v{S[x]+4*q+1}')
            grp.append(f'v_cvt_pk_bf16_f32 v{P[x]+2*q+1}, v{S[x]+4*q+2}, v{S[x]+4*q+3}')
            out.append(grp)
        return out
    def phase(x, mf, pre={}, post={}):
        sm = softmax(x)
        for j in range(4):
            grp = sm[j]
            if j in pre:
                g(grp[0]); grp = grp[1:]
                for l in pre[j]: g(l)
            g(mf[j])
            for l in post.get(j, []): g(l)
            for l in grp: g(l)

    if not opts.get('nopf'):
        Lpf = g.newlabel('attn_pf')
        g(f's_lshr_b32 s{sT0}, s2, 3')
        g(f's_mul_i32 s{sT0}, s{sT0}, 3')
        g(f's_add_u32 s{sT0}, s{sT0}, s{sWave}')
        g(f's_cmp_ge_u32 s{sWave}, 3')
        g(f's_cbranch_scc1 {Lpf}')
        g(f's_cmp_ge_u32 s{sT0}, 81')
        g(f's_cbranch_scc1 {Lpf}')
        g(f's_lshl_b32 s{sT0}, s{sT0}, 13')
        g(f's_add_u32 s{sT0}, s{sT0}, {WOT_OFF}')
        g(f'v_lshlrev_b32 v{vT[0]}, 7, v{vLane}')
        g(f'buffer_load_dword v{vT[1]}, v{vT[0]}, s[{SKV}:{SKV+3}], s{sT0} offen')
        g.label(Lpf)
    if opts.get('prio'):
        Lp = g.newlabel('prio')
        g(f's_cmp_eq_u32 s{sHf}, 1')
        g(f's_cbranch_scc0 {Lp}')
        g('s_setprio 1')
        g.label(Lp)
    for l in rdK(0) + rdV(0): g(l)
    g('s_waitcnt lgkmcnt(2)')
    for l in qk(0): g(l)
    g('s_nop 11')

    LLOOP = g.newlabel('attn_loop')
    g.label(LLOOP)
    for n in range(8):
        q = qk(1); p = pv(1, n-1)
        pre = {}; post = {1: rdK(n+1), 3: rdV(n+1)}
        if n % 4 == 3:
            nxt = sM0 if n == 3 else sM1
            pre[1] = ['s_waitcnt vmcnt(0) lgkmcnt(0)', 's_barrier'] if not opts.get('nobar2') else ['s_waitcnt lgkmcnt(0)', 's_nop 0']
            Ls = g.newlabel('attn_nodma')
            lim = NSTAGE//2 - 1
            post[1] = rdK(n+1)
            if not opts.get('nodma2'): post[2] = [f's_cmp_ge_u32 s{sIt}, {lim}', f's_cbranch_scc1 {Ls}', f's_mov_b32 m0, s{nxt}', f's_add_u32 s{sT2}, s{sRecG}, 0',
                       f'buffer_load_dwordx4 v{vDm}, s[{SKV}:{SKV+3}], s{sT2} offen lds',
                       f'buffer_load_dwordx4 v{vDm}, s[{SKV}:{SKV+3}], s{sT2} offen offset:1024 lds',
                       f'buffer_load_dwordx4 v{vDm}, s[{SKV}:{SKV+3}], s{sT2} offen offset:2048 lds',
                       f's_add_u32 s{sRecG}, s{sRecG}, {4*REC}', Ls + ':']
        phase(0, [q[0], q[1], p[0], p[1]], pre, post)
        q = qk(0); p = pv(0, n)
        phase(1, [q[0], q[1], p[0], p[1]], {0: ['s_waitcnt lgkmcnt(2)']}, {})
    g(f's_add_u32 s{sIt}, s{sIt}, 1')
    g(f's_cmp_lt_u32 s{sIt}, {NSTAGE//2}')
    g(f's_cbranch_scc1 {LLOOP}')
    if opts.get('stamps2'): g('s_memtime s[64:65]')
    for l in pv(1, 7): g(l)

    LH1 = g.newlabel('attn_h1'); LJ = g.newlabel('attn_join')
    g(f's_mul_i32 s{sT0}, s{sQs}, 6144')
    g(f's_add_u32 s{sT0}, s{sT0}, {XCH}')
    g(f'v_add_u32 v{vT[0]}, s{sT0}, v{vDm}')
    g(f's_cmp_eq_u32 s{sHf}, 1')
    g(f's_cbranch_scc1 {LH1}')
    for k in range(3): g(f'ds_write_b128 v{vT[0]}, v[{O[1]+4*k}:{O[1]+4*k+3}] offset:{3072 + k*1024}')
    g(f's_branch {LJ}')
    g.label(LH1)
    for k in range(3): g(f'ds_write_b128 v{vT[0]}, v[{O[0]+4*k}:{O[0]+4*k+3}] offset:{k*1024}')
    for r in range(12): g(f'v_mov_b32 v{O[0]+r}, v{O[1]+r}')
    for r in range(4): g(f'v_mov_b32 v{Qm[0]+r}, v{Qm[1]+r}')
    g(f'v_mov_b32 v{Qe[0]}, v{Qe[1]}')
    g(f'v_add_u32 v{vT[0]}, 3072, v{vT[0]}')
    g.label(LJ)
    g('s_waitcnt lgkmcnt(0)')
    g('s_barrier')
    for k in range(3): g(f'ds_read_b128 v[{S[0]+4*k}:{S[0]+4*k+3}], v{vT[0]} offset:{k*1024}')
    g(f'''s_lshl_b32 s{sT0}, s{sC}, 8
s_lshl_b32 s{sT1}, s{sQs}, 6
s_add_u32 s{sT0}, s{sT0}, s{sT1}
s_lshl_b32 s{sT1}, s{sHf}, 5
s_add_u32 s{sT0}, s{sT0}, s{sT1}
s_lshl_b32 s{sT1}, s{sH}, 11
s_add_u32 s{sT1}, s{sT0}, s{sT1}
s_lshl_b32 s{sT1}, s{sT1}, 5
s_add_u32 s{sT1}, s{sT1}, {OM_OFF}
s_lshr_b32 s{sT2}, s{sH}, 3
s_add_u32 s{sT2}, s{sT2}, 32
s_lshl_b32 s{sT2}, s{sT2}, 11
s_add_u32 s{sT0}, s{sT0}, s{sT2}
s_lshl_b32 s{sT0}, s{sT0}, 5
s_and_b32 s{sT2}, s{sH}, 7
s_lshl_b32 s{sT2}, s{sT2}, 2
s_add_u32 s{sT0}, s{sT0}, s{sT2}
s_add_u32 s{sT0}, s{sT0}, {OM_OFF}''')
    g('s_waitcnt lgkmcnt(0)')
    for r in range(12): g(f'v_add_f32 v{O[0]+r}, v{O[0]+r}, v{S[0]+r}')
    Of = O[0]
    LST = g.newlabel('attn_store')
    t3 = S[1]
    g(f'v_mul_f32 v{t3}, 0, v{Of}')
    for r in range(1, 10): g(f'v_fma_f32 v{t3}, v{Of+r}, 0, v{t3}')
    g(f'v_add_f32 v{t3}, v{t3}, v{Of+10}')
    g(f's_mov_b32 s{sT2}, {f32bits(2.0**-40):#x}')
    g(f'v_cmp_le_f32 vcc, s{sT2}, v{t3}')
    g(f's_mov_b32 s{sT2}, {f32bits(2.0**40):#x}')
    g(f'v_cmp_ge_f32 s[34:35], s{sT2}, v{t3}')
    g('s_and_b64 vcc, vcc, s[34:35]')
    g('s_cmp_eq_u64 vcc, -1')
    if opts.get('forcefb'): g('s_cmp_eq_u32 s2, -1')
    g(f's_cbranch_scc1 {LST}')

    vM = S[1] + 1
    sK = sIt
    g(f'v_and_b32 v{vT[1]}, 31, v{vLane}')
    g(f'v_lshlrev_b32 v{vEa}, 2, v{vT[1]}')
    g(f's_mul_i32 s{sT2}, s{sHf}, {4*RECL}')
    g(f'v_subrev_u32 v{vVa}, s{sT2}, v{vVa}')
    g(f'v_mov_b32 v{vM}, 0xff7fffff')
    g(f'v_mov_b32 v{Qe[0]+1}, 0')
    for pas in range(2):
        LM = g.newlabel('attn_fb')
        if pas == 1:
            for r in range(16): g(f'v_mov_b32 v{O[0]+r}, 0')
        g(f's_mov_b32 s{sK}, s{sKVh}')
        g(f's_add_u32 s{sRecG}, s{sKVh}, {KV_HSTRIDE}')
        g.label(LM)
        g(f'buffer_load_dwordx4 v[{Km}:{Km+3}], v{vDm}, s[{SKV}:{SKV+3}], s{sK} offen')
        g(f'buffer_load_dword v{Ke}, v{vEa}, s[{SKV}:{SKV+3}], s{sK} offen offset:1024')
        if pas == 1:
            g(f'buffer_load_dwordx4 v[{Vf[0][0]}:{Vf[0][0]+3}], v{vVa}, s[{SKV}:{SKV+3}], s{sK} offen offset:{REC_K}')
            g(f'buffer_load_dwordx4 v[{Vf[0][1]}:{Vf[0][1]+3}], v{vVa}, s[{SKV}:{SKV+3}], s{sK} offen offset:{REC_K + 608}')
        g('s_waitcnt vmcnt(0)')
        for l in qk(0): g(l)
        if pas == 0:
            for r in range(0, 16, 2): g(f'v_max3_f32 v{vM}, v{S[0]+r}, v{S[0]+r+1}, v{vM}')
        else:
            for grp in softmax(0):
                for l in grp: g(l)
            for l in pv(0, 0): g(l)
        g(f's_add_u32 s{sK}, s{sK}, {REC}')
        g(f's_cmp_lt_u32 s{sK}, s{sRecG}')
        g(f's_cbranch_scc1 {LM}')
        if pas == 0:
            g(f'v_mov_b32 v{vT[0]}, v{vM}')
            g(f'v_permlane32_swap_b32 v{vT[0]}, v{vM}')
            g(f'v_max_f32 v{vM}, v{vT[0]}, v{vM}')
            g(f'v_cmp_gt_u32 vcc, 32, v{vLane}')
            g(f'v_cvt_pk_bf16_f32 v{vT[0]}, -v{vM}, -v{vM}')
            g(f'v_lshlrev_b32 v{vT[1]}, 16, v{vT[0]}')
            g(f'v_sub_f32 v{vT[1]}, -v{vM}, v{vT[1]}')
            g(f'v_cvt_pk_bf16_f32 v{vT[1]}, v{vT[1]}, v{vT[1]}')
            g(f'v_and_b32 v{vT[0]}, 0xffff, v{vT[0]}')
            g(f'v_lshl_or_b32 v{vT[0]}, v{vT[1]}, 16, v{vT[0]}')
            g(f'v_cndmask_b32 v{Qe[0]+1}, 0, v{vT[0]}, vcc')

    g.label(LST)
    g(f'v_rcp_f32 v{vT[0]}, v{Of+10}')
    for r in range(10): g(f'v_mul_f32 v{Of+r}, v{Of+r}, v{vT[0]}')
    A, B = P[0], P[0] + 2
    g(f'v_cvt_pk_bf16_f32 v{A}, v{Of}, v{Of+1}')
    g(f'v_cvt_pk_bf16_f32 v{A+1}, v{Of+2}, v{Of+3}')
    g(f'v_cvt_pk_bf16_f32 v{B}, v{Of+4}, v{Of+5}')
    g(f'v_cvt_pk_bf16_f32 v{B+1}, v{Of+6}, v{Of+7}')
    g(f'v_cvt_pk_bf16_f32 v{P[1]}, v{Of+8}, v{Of+9}')
    g(f'v_and_b32 v{vT[0]}, 31, v{vLane}')
    g(f'v_lshrrev_b32 v{vT[1]}, 5, v{vLane}')
    g(f'v_permlane32_swap_b32 v{A}, v{B}')
    g(f'v_permlane32_swap_b32 v{A+1}, v{B+1}')
    g(f'v_lshlrev_b32 v{S[0]}, 5, v{vT[0]}')
    g(f'v_lshl_add_u32 v{S[0]}, v{vT[1]}, 4, v{S[0]}')
    g(f'v_lshlrev_b32 v{vT[0]}, 5, v{vT[0]}')
    g(f'buffer_store_dwordx4 v[{A}:{A+3}], v{S[0]}, s[{SKV}:{SKV+3}], s{sT1} offen')
    set_exec(g, (1 << 32) - 1)
    g(f'buffer_store_dword v{P[1]}, v{vT[0]}, s[{SKV}:{SKV+3}], s{sT0} offen')
    g('s_mov_b64 exec, -1')
    g(f's_branch {done_label}')
```

```python
from asmlib import *
from layout import *
import struct
import k_kgen

def f32bits(x): return struct.unpack('<I', struct.pack('<f', x))[0]

STAGE = 17408
NSLOT = 6
NKS = 18
RSQ = 296
RSV = 264
STG = 0
KG_BASE = NSLOT * STAGE
LDS_BYTES = KG_BASE + 4 * k_kgen.TASK_LDS + 2 * k_kgen.TAB_LDS

def srd(g, s, kernarg_off):
    g(f's_load_dwordx2 s[{s}:{s+1}], s[0:1], {kernarg_off}')
def srd_fin(g, s, size):
    g(f's_mov_b32 s{s+2}, {size}')
    g(f's_mov_b32 s{s+3}, 0x20000')

def set_exec(g, mask):
    if mask == (1 << 64) - 1:
        g('s_mov_b64 exec, -1')
    elif mask < (1 << 31):
        g(f's_mov_b64 exec, {mask:#x}')
    else:
        lo = mask & 0xffffffff; hi = mask >> 32
        g('s_mov_b32 exec_lo, -1' if lo == 0xffffffff else f's_mov_b32 exec_lo, {lo:#x}')
        g('s_mov_b32 exec_hi, -1' if hi == 0xffffffff else f's_mov_b32 exec_hi, {hi:#x}')

def gen_qkv_gemm(g, done_label, opts={}):
    SX, SW, SO = 4, 8, 12
    sWave, sTw, sLw, sMt, sNt, sSec = 16, 17, 18, 19, 20, 21
    sKx, sKw, sKc, sMX, sMW, sT0, sT1, sT2, sScale, sGS, sOutBase, sKx2 = 22, 23, 24, 25, 26, 27, 28, 29, 30, 31, 32, 33
    V = Regs(1, 128)
    vLane = V.alloc(); vG = V.alloc(); vI = V.alloc()
    vXg = V.alloc(); vWg = V.alloc(3); V.alloc(2)
    vXr = V.alloc(2); vWr = V.alloc(2)
    vEw = V.alloc()
    V.alloc()
    vT = [V.alloc() for i in range(8)]
    VC = Regs(V.next, 256)
    acc = VC.alloc(72, 4)
    fr = [VC.alloc(44, 4), VC.alloc(44, 4)]
    kg = k_kgen.KGen(V.next, 256, 76, vLane)
    CP = 200
    assert sScale % 2 == 0 and vT[6] % 2 == 0
    usekg = not opts.get('nokg')
    LCOMP = g.newlabel('g1_comp'); LKG = g.newlabel('g1_kg'); LQE = g.newlabel('qk_epi'); LVE = g.newlabel('v_epi')
    g(f'v_lshrrev_b32 v{vT[0]}, 6, v0')
    g(f'v_and_b32 v{vLane}, 63, v0')
    g(f'v_readfirstlane_b32 s{sWave}, v{vT[0]}')
    g(f's_cmp_lt_u32 s{sWave}, 4')
    g(f's_cbranch_scc1 {LCOMP}')
    load_kernargs(g, [B_X, B_WQKV, P_WS])
    def tile_map():
        g(f'''s_and_b32 s{sT0}, s2, 7
s_lshr_b32 s{sT1}, s2, 3
s_and_b32 s{sMt}, s{sT0}, 3
s_lshl_b32 s{sMt}, s{sMt}, 2
s_and_b32 s{sT2}, s{sT1}, 3
s_add_u32 s{sMt}, s{sMt}, s{sT2}
s_lshr_b32 s{sNt}, s{sT0}, 2
s_mul_i32 s{sNt}, s{sNt}, 6
s_lshr_b32 s{sT2}, s{sT1}, 2
s_add_u32 s{sNt}, s{sNt}, s{sT2}
s_lshr_b32 s{sSec}, s{sNt}, 2''')
    tile_map()
    ra, rb, rc = [int(x) for x in opts.get('rot', '5,20,7').split(',')]
    g(f'''s_and_b32 s{sT2}, s{sT1}, 3
s_mul_i32 s{sKc}, s{sT2}, {ra}
s_lshr_b32 s{sT2}, s{sT1}, 2
s_mul_i32 s{sT2}, s{sT2}, {rb}
s_add_u32 s{sKc}, s{sKc}, s{sT2}
s_mul_i32 s{sT2}, s{sT0}, {rc}
s_add_u32 s{sKc}, s{sKc}, s{sT2}
s_mul_i32 s{sT2}, s{sKc}, 3641
s_lshr_b32 s{sT2}, s{sT2}, 16
s_mul_i32 s{sT2}, s{sT2}, 18
s_sub_u32 s{sKc}, s{sKc}, s{sT2}
s_lshl_b32 s{sKx}, s{sKc}, 6
s_mul_i32 s{sKw}, s{sKc}, {32*3456}
s_sub_u32 s{sLw}, s{sWave}, 4''')
    g(f'''v_lshrrev_b32 v{vT[0]}, 2, v{vLane}
v_and_b32 v{vT[1]}, 3, v{vLane}
v_lshrrev_b32 v{vT[2]}, 2, v{vT[0]}
v_and_b32 v{vT[2]}, 2, v{vT[2]}
v_xor_b32 v{vT[1]}, v{vT[1]}, v{vT[2]}
s_lshl_b32 s{sT0}, s{sMt}, 7
s_lshl_b32 s{sT1}, s{sLw}, 5
s_add_u32 s{sT0}, s{sT0}, s{sT1}
v_add_u32 v{vT[0]}, s{sT0}, v{vT[0]}
v_mul_u32_u24 v{vT[0]}, 1152, v{vT[0]}
v_lshl_add_u32 v{vXg}, v{vT[1]}, 4, v{vT[0]}''')
    g(f's_mul_i32 s{sT1}, s{sNt}, 288')
    g(f's_lshl_b32 s{sT0}, s{sLw}, 7')
    for jj in range(3):
        if jj < 2: g(f'v_add_u32 v{vT[0]}, s{sT0}, v{vLane}'); g(f's_add_u32 s{sT0}, s{sT0}, 64')
        else: g(f'v_add_u32 v{vT[0]}, 512, v{vLane}')
        g(f'''v_mul_u32_u24 v{vT[1]}, 3641, v{vT[0]}
v_lshrrev_b32 v{vT[1]}, 16, v{vT[1]}
v_mul_u32_u24 v{vT[2]}, 18, v{vT[1]}
v_sub_u32 v{vT[2]}, v{vT[0]}, v{vT[2]}
v_and_b32 v{vT[3]}, 19, v{vT[1]}
v_bfe_u32 v{vT[4]}, v{vT[1]}, 2, 1
v_lshl_add_u32 v{vT[3]}, v{vT[4]}, 3, v{vT[3]}
v_bfe_u32 v{vT[4]}, v{vT[1]}, 3, 1
v_lshl_add_u32 v{vT[3]}, v{vT[4]}, 2, v{vT[3]}
v_mul_u32_u24 v{vT[3]}, 3456, v{vT[3]}
v_lshl_add_u32 v{vT[3]}, v{vT[2]}, 4, v{vT[3]}
v_add_u32 v{vWg+jj}, s{sT1}, v{vT[3]}''')
    g(f's_lshl_b32 s{sMX}, s{sLw}, 11')
    g(f's_add_u32 s{sMW}, s{sMX}, 8192')
    g('s_waitcnt lgkmcnt(0)')
    srd_from(g, SX, B_X, L*D*2); srd_from(g, SW, B_WQKV, D*3*D*2); srd_from(g, SO, P_WS, WS_USED)
    stamp(g, opts, 'g1', 0)
    NL = 4
    def dma_stage(s):
        sb = (s % NSLOT) * STAGE
        for j in range(2):
            g(f's_add_u32 m0, s{sMX}, {sb + 1024*j}')
            g(f's_add_u32 s{sKx2}, s{sKx}, {16*1152*j}')
            g(f'buffer_load_dwordx4 v{vXg}, s[{SX}:{SX+3}], s{sKx2} offen lds')
            g(f's_add_u32 m0, s{sMW}, {sb + 1024*j}')
            if j == 0: g(f's_add_u32 s{sKc}, s{sKc}, 1')
            else: g(f's_cmp_eq_u32 s{sLw}, {s % 4}')
            g(f'buffer_load_dwordx4 v{vWg+j}, s[{SW}:{SW+3}], s{sKw} offen lds')
        Ls = g.newlabel('nox')
        g(f's_mov_b32 m0, {sb + 8192 + 8192}')
        g(f's_cbranch_scc0 {Ls}')
        g(f'buffer_load_dwordx4 v{vWg+2}, s[{SW}:{SW+3}], s{sKw} offen lds')
        g.label(Ls)
        g(f's_add_u32 s{sKx}, s{sKx}, 64')
        g(f's_add_u32 s{sKw}, s{sKw}, {32*3456}')
        g(f's_cmp_eq_u32 s{sKc}, {NKS}')
        g(f's_cselect_b32 s{sKc}, 0, s{sKc}')
        g(f's_cselect_b32 s{sKx}, 0, s{sKx}')
        g(f's_cselect_b32 s{sKw}, 0, s{sKw}')
    g('s_barrier')
    NPRO = int(opts.get('npro', 5))
    for s in range(NPRO): dma_stage(s)
    issued = NPRO
    stamp(g, opts, 'g1', 1)
    g(f's_waitcnt vmcnt({NL*(issued-1)})')
    g('s_barrier')
    stamp(g, opts, 'g1', 3)
    depth = int(opts.get('depth', NSLOT))
    n = 0
    while issued < min(NKS, depth) and n < 2:
        dma_stage(issued); issued += 1; n += 1
    def kg_setup():
        g(f'''s_lshr_b32 s{sT0}, s{sLw}, 1
s_lshl_b32 s{kg.sCh}, s2, 1
s_add_u32 s{kg.sCh}, s{kg.sCh}, s{sT0}
s_and_b32 s{kg.sHf}, s{sLw}, 1
s_mul_i32 s{kg.sLB}, s{sT0}, {2*k_kgen.TASK_LDS}
s_add_u32 s{kg.sLB}, s{kg.sLB}, {KG_BASE}
s_mul_i32 s{kg.sTB}, s{sT0}, {k_kgen.TAB_LDS}
s_add_u32 s{kg.sTB}, s{kg.sTB}, {KG_BASE + 4*k_kgen.TASK_LDS}''')
    for s in range(NKS - 1):
        g(f's_waitcnt vmcnt({NL*max(issued - 1 - (s+1), 0)})')
        g('s_barrier')
        n = 0
        while issued < NKS and issued <= s + depth and n < 2:
            dma_stage(issued); issued += 1; n += 1
        if s == 5: stamp(g, opts, 'g1', 4)
        if usekg and s == 10: kg_setup()
        if usekg and 11 <= s <= 14:
            Lf = g.newlabel('g1_fin')
            g(f's_cmp_eq_u32 s{kg.sHf}, 1')
            g(f's_cbranch_scc1 {Lf}')
            if s == 13: g('s_waitcnt lgkmcnt(0)')
            for l in kg.finish_chunks()[s - 11]: g(l)
            if s == 14: g('s_waitcnt lgkmcnt(0)')
            g.label(Lf)
        if usekg and s == 16: kg.tail3(g, SO)
    stamp(g, opts, 'g1', 5)
    g(f's_cmp_eq_u32 s{sSec}, 2')
    g(f's_cbranch_scc1 {LVE}')
    g(f's_branch {LQE}')

    g.label(LCOMP)
    g(f's_mov_b32 s{sTw}, s{sWave}')
    if usekg:
        load_kernargs(g, [A_LAR, A_AIM, A_CR, A_CI, A_LDT])
        g(f'''s_lshr_b32 s{sT0}, s{sTw}, 1
s_lshl_b32 s{kg.sCh}, s2, 1
s_add_u32 s{kg.sCh}, s{kg.sCh}, s{sT0}
s_and_b32 s{kg.sHf}, s{sTw}, 1
s_mul_i32 s{kg.sLB}, s{sTw}, {k_kgen.TASK_LDS}
s_add_u32 s{kg.sLB}, s{kg.sLB}, {KG_BASE}''')
        g('s_waitcnt lgkmcnt(0)')
        kg.loads(g)
    load_kernargs(g, [P_WS])
    tile_map()
    g('s_barrier')
    if usekg:
        g('s_waitcnt vmcnt(0)')
        stamp(g, opts, 'g1', 2)
        for l in kg.body(): g('s_waitcnt lgkmcnt(0)' if l == 'NEXT' else l)
        kg.publish(g)
    g(f'v_lshrrev_b32 v{vG}, 4, v{vLane}')
    g(f'v_and_b32 v{vI}, 15, v{vLane}')
    g(f'''v_lshrrev_b32 v{vT[0]}, 2, v{vI}
v_and_b32 v{vT[0]}, 2, v{vT[0]}
v_xor_b32 v{vT[0]}, v{vT[0]}, v{vG}
v_lshlrev_b32 v{vT[0]}, 4, v{vT[0]}
s_lshl_b32 s{sT0}, s{sTw}, 5
v_add_u32 v{vT[1]}, s{sT0}, v{vI}
v_lshl_add_u32 v{vXr}, v{vT[1]}, 6, v{vT[0]}''')
    g(f'''v_lshrrev_b32 v{vT[0]}, 1, v{vG}
v_lshlrev_b32 v{vT[0]}, 4, v{vT[0]}
v_and_b32 v{vT[1]}, 1, v{vG}
v_lshl_add_u32 v{vT[0]}, v{vT[1]}, 2, v{vT[0]}
v_lshrrev_b32 v{vT[1]}, 2, v{vI}
v_add_u32 v{vT[0]}, v{vT[0]}, v{vT[1]}
v_mul_u32_u24 v{vT[0]}, 288, v{vT[0]}
v_and_b32 v{vT[1]}, 3, v{vI}
v_lshl_add_u32 v{vWr}, v{vT[1]}, 3, v{vT[0]}
v_add_u32 v{vXr+1}, {3*STAGE}, v{vXr}
v_add_u32 v{vWr+1}, {3*STAGE}, v{vWr}''')
    g('s_waitcnt lgkmcnt(0)')
    srd_from(g, SO, P_WS, WS_USED)
    LV = g.newlabel('qkv_v')
    NCT = 9
    def mainloop(isV):
        def reads(s, fs):
            sl = s % NSLOT
            bank = sl // 3
            sb = (sl % 3) * STAGE
            ax = vXr + bank; aw = vWr + bank
            out = []
            for m in range(2):
                out.append(f'ds_read_b128 v[{fs+4*m}:{fs+4*m+3}], v{ax} offset:{sb + m*1024}')
            for c in range(NCT):
                for h in range(2):
                    r = fs + 8 + 4*c + 2*h
                    out.append(f'ds_read_b64_tr_b16 v[{r}:{r+1}], v{aw} offset:{sb + 8192 + h*2304 + c*32}')
            return out
        def mfmas(s, fs):
            out = []
            for c in range(NCT):
                for m in range(2):
                    a = acc + (c*2+m)*4
                    xf = f'v[{fs+4*m}:{fs+4*m+3}]'; wf = f'v[{fs+8+4*c}:{fs+8+4*c+3}]'
                    A, B = (xf, wf) if isV else (wf, xf)
                    C = '0' if s == 0 else f'v[{a}:{a+3}]'
                    out.append(f'v_mfma_f32_16x16x32_bf16 v[{a}:{a+3}], {A}, {B}, {C}')
            return out
        def stage_out(t, scale):
            c, m = t // 2, t % 2
            a = acc + t*4
            out = []
            if scale:
                out.append(f'v_pk_mul_f32 v[{a}:{a+1}], v[{a}:{a+1}], s[{sScale}:{sScale+1}] op_sel_hi:[1,0]')
                out.append(f'v_pk_mul_f32 v[{a+2}:{a+3}], v[{a+2}:{a+3}], s[{sScale}:{sScale+1}] op_sel_hi:[1,0]')
            out.append(f'v_cvt_pk_bf16_f32 v{a}, v{a}, v{a+1}')
            out.append(f'v_cvt_pk_bf16_f32 v{a+1}, v{a+2}, v{a+3}')
            off = (c*16*RSV + m*32) if isV else (c*32 + m*16*RSQ)
            out.append(f'ds_write_b64 v{vEw}, v[{a}:{a+1}] offset:{off}')
            return out
        g('s_barrier')
        for l in reads(0, fr[0]): g(l)
        for s in range(NKS - 1):
            g('s_waitcnt lgkmcnt(0)')
            g('s_barrier')
            rd = reads(s+1, fr[(s+1) % 2])
            mf = mfmas(s, fr[s % 2])
            k = 0
            for i, m_ in enumerate(mf):
                g(m_)
                nrd = 2 if i < 2 else 1
                for _ in range(nrd):
                    if k < len(rd): g(rd[k]); k += 1
            while k < len(rd): g(rd[k]); k += 1
        g('s_waitcnt lgkmcnt(0)')
        mf = mfmas(NKS-1, fr[(NKS-1) % 2])
        LAG = 4
        def last(scale):
            for i in range(len(mf) + LAG):
                if i < len(mf): g(mf[i])
                if i >= LAG:
                    for l in stage_out(i - LAG, scale): g(l)
        if isV:
            last(False)
        else:
            Lq = g.newlabel('g1_q'); Lz = g.newlabel('g1_z')
            g(f's_cmp_eq_u32 s{sSec}, 0')
            g(f's_cbranch_scc1 {Lq}')
            last(False)
            g(f's_branch {Lz}')
            g.label(Lq)
            g(f's_mov_b32 s{sScale}, {f32bits(QSCALE):#x}')
            last(True)
            g.label(Lz)
    g(f's_cmp_eq_u32 s{sSec}, 2')
    g(f's_cbranch_scc1 {LV}')
    g(f'''s_lshl_b32 s{sT0}, s{sTw}, 5
v_add_u32 v{vT[0]}, s{sT0}, v{vI}
v_mul_u32_u24 v{vT[0]}, {RSQ}, v{vT[0]}
v_lshl_add_u32 v{vEw}, v{vG}, 3, v{vT[0]}
v_add_u32 v{vEw}, {STG}, v{vEw}''')
    mainloop(False)
    g(f's_branch {LQE}')
    g.label(LV)
    g(f'''v_mul_u32_u24 v{vT[0]}, {RSV}, v{vI}
v_lshl_add_u32 v{vT[0]}, v{vG}, 3, v{vT[0]}
s_lshl_b32 s{sT0}, s{sTw}, 6
s_add_u32 s{sT0}, s{sT0}, {STG}
v_add_u32 v{vEw}, s{sT0}, v{vT[0]}''')
    mainloop(True)
    g(f's_branch {LVE}')

    def outbase():
        g(f'''s_cmp_eq_u32 s{sSec}, 0
s_mov_b32 s{sGS}, {REC}
s_cselect_b32 s{sGS}, {REC_K}, s{sGS}
s_and_b32 s{sT0}, s{sNt}, 3
s_lshl_b32 s{sT0}, s{sT0}, 3
s_add_u32 s{sT0}, s{sT0}, s{sWave}
s_lshl_b32 s{sT0}, s{sT0}, 6
s_lshl_b32 s{sT1}, s{sMt}, 2
s_add_u32 s{sT0}, s{sT0}, s{sT1}
s_mul_i32 s{sOutBase}, s{sT0}, s{sGS}
s_cmp_eq_u32 s{sSec}, 0
s_cselect_b32 s{sT1}, {Q_OFF}, {KV_OFF}
s_add_u32 s{sOutBase}, s{sOutBase}, s{sT1}
s_cmp_eq_u32 s{sSec}, 2
s_cselect_b32 s{sT1}, {REC_K}, 0
s_add_u32 s{sOutBase}, s{sOutBase}, s{sT1}''')
    def kg_end():
        return

    g.label(LQE)
    outbase()
    vA, vB, vC, vD = vT[0], vT[1], vT[2], vT[3]
    g(f'''v_and_b32 v{vA}, 31, v{vLane}
v_mul_u32_u24 v{vA}, {RSQ}, v{vA}
v_lshrrev_b32 v{vB}, 5, v{vLane}
v_lshl_add_u32 v{vA}, v{vB}, 4, v{vA}
s_mul_i32 s{sT0}, s{sWave}, 36
s_add_u32 s{sT0}, s{sT0}, {STG}
v_add_u32 v{vA}, s{sT0}, v{vA}
v_lshlrev_b32 v{vB}, 4, v{vLane}''')
    g(f'''v_lshrrev_b32 v{vC}, 3, v{vLane}
v_and_b32 v{vD}, 7, v{vLane}
v_mul_lo_u32 v{vT[4]}, v{vC}, s{sGS}
v_lshl_add_u32 v{vT[4]}, v{vD}, 4, v{vT[4]}
v_add_u32 v{vT[4]}, 1024, v{vT[4]}
v_lshlrev_b32 v{vC}, 5, v{vC}
v_lshl_add_u32 v{vC}, v{vD}, 2, v{vC}
v_mul_u32_u24 v{vC}, {RSQ}, v{vC}
s_add_u32 s{sT0}, s{sT0}, 32
v_add_u32 v{vC}, s{sT0}, v{vC}''')
    g('s_waitcnt lgkmcnt(0)')
    g('s_barrier')
    stamp(g, opts, 'g1', 6)
    d0 = CP
    for tau in range(4):
        d = d0 + 4*tau
        g(f'ds_read2_b32 v[{d}:{d+1}], v{vA} offset0:0 offset1:1')
        g(f'ds_read2_b32 v[{d+2}:{d+3}], v{vA} offset0:2 offset1:3')
        if tau < 3: g(f'v_add_u32 v{vA}, {32*RSQ}, v{vA}')
    d = d0 + 16
    set_exec(g, (1 << 32) - 1)
    g(f'ds_read2_b32 v[{d}:{d+1}], v{vC} offset0:0 offset1:{RSQ//4}')
    g(f'ds_read2_b32 v[{d+2}:{d+3}], v{vC} offset0:{2*RSQ//4} offset1:{3*RSQ//4}')
    g('s_mov_b64 exec, -1')
    for tau in range(4):
        d = d0 + 4*tau
        g(f's_waitcnt lgkmcnt({2*(3-tau)+2})')
        g(f'buffer_store_dwordx4 v[{d}:{d+3}], v{vB}, s[{SO}:{SO+3}], s{sOutBase} offen')
        if tau < 3:
            g(f's_add_u32 s{sOutBase}, s{sOutBase}, s{sGS}')
    g(f's_mul_i32 s{sT0}, s{sGS}, 3')
    g(f's_sub_u32 s{sOutBase}, s{sOutBase}, s{sT0}')
    g('s_waitcnt lgkmcnt(0)')
    set_exec(g, (1 << 32) - 1)
    d = d0 + 16
    g(f'buffer_store_dwordx4 v[{d}:{d+3}], v{vT[4]}, s[{SO}:{SO+3}], s{sOutBase} offen')
    g('s_mov_b64 exec, -1')
    kg_end()
    stamp(g, opts, 'g1', 7)
    g(f's_branch {done_label}')

    g.label(LVE)
    outbase()
    g(f'''v_mov_b32 v{vT[6]}, 0x3f803f80
v_mov_b32 v{vT[7]}, 0x3f803f80
v_lshlrev_b32 v{vT[0]}, 3, v{vLane}
v_add_u32 v{vT[0]}, {STG + 144*RSV}, v{vT[0]}''')
    set_exec(g, (1 << 32) - 1)
    g(f'ds_write_b64 v{vT[0]}, v[{vT[6]}:{vT[7]}]')
    g('s_mov_b64 exec, -1')
    vA, vA2, vB, vB2 = vT[0], vT[1], vT[2], vT[3]
    g(f's_mul_i32 s{sT0}, s{sWave}, 18')
    for (dst, add) in ((vA, 0), (vA2, 64)):
        g(f'''v_add_u32 v{vT[4]}, {add}, v{vLane}
v_mul_u32_u24 v{vT[5]}, 3450, v{vT[4]}
v_lshrrev_b32 v{vT[5]}, 16, v{vT[5]}
v_mul_u32_u24 v{vT[6]}, 19, v{vT[5]}
v_sub_u32 v{vT[6]}, v{vT[4]}, v{vT[6]}
v_add_u32 v{vT[4]}, s{sT0}, v{vT[6]}
v_cmp_eq_u32 vcc, 18, v{vT[6]}
v_mov_b32 v{vT[6]}, 144
v_lshrrev_b32 v{vT[7]}, 1, v{vT[5]}
v_cndmask_b32 v{vT[4]}, v{vT[4]}, v{vT[6]}, vcc
v_mul_u32_u24 v{vT[4]}, {RSV}, v{vT[4]}
v_lshl_add_u32 v{vT[4]}, v{vT[7]}, 5, v{vT[4]}
v_and_b32 v{vT[5]}, 1, v{vT[5]}
v_lshl_add_u32 v{dst}, v{vT[5]}, 3, v{vT[4]}
v_add_u32 v{dst}, {STG}, v{dst}''')
    g(f'v_lshlrev_b32 v{vB}, 4, v{vLane}')
    g('s_waitcnt lgkmcnt(0)')
    g('s_barrier')
    stamp(g, opts, 'g1', 6)
    d0 = CP
    for tau in range(4):
        d = d0 + 8*tau
        g(f'ds_read2_b64 v[{d}:{d+3}], v{vA} offset0:{tau*8} offset1:{tau*8+2}')
        g(f'ds_read2_b64 v[{d+4}:{d+7}], v{vA2} offset0:{tau*8} offset1:{tau*8+2}')
    for tau in range(4):
        d = d0 + 8*tau
        g(f's_waitcnt lgkmcnt({2*(3-tau)})')
        g(f'buffer_store_dwordx4 v[{d}:{d+3}], v{vB}, s[{SO}:{SO+3}], s{sOutBase} offen')
        set_exec(g, (1 << 12) - 1)
        g(f'buffer_store_dwordx4 v[{d+4}:{d+7}], v{vB}, s[{SO}:{SO+3}], s{sOutBase} offen offset:1024')
        g('s_mov_b64 exec, -1')
        if tau < 3: g(f's_add_u32 s{sOutBase}, s{sOutBase}, s{sGS}')
    kg_end()
    stamp(g, opts, 'g1', 7)
    g(f's_branch {done_label}')
```

```python
from asmlib import *
from layout import *
from k_gemm1 import srd, srd_fin, set_exec

XB = 4096; WB = 6144
STAGE = XB + WB
RSO = 208
LDS_BYTES = 4 * 3 * STAGE

def wot_loads(g, SW, sIdx, sT, vLane, vb):
    sT0, sT1, sT2, sT3 = sT
    a, b, c = vb, vb+1, vb+2; val = vb + 4; out = vb + 12
    g(f's_mul_i32 s{sT0}, s{sIdx}, 10923')
    g(f's_lshr_b32 s{sT0}, s{sT0}, 16')
    g(f's_mul_i32 s{sT1}, s{sT0}, 6')
    g(f's_sub_u32 s{sT1}, s{sIdx}, s{sT1}')
    g(f's_mul_i32 s{sT2}, s{sT0}, 3641')
    g(f's_lshr_b32 s{sT2}, s{sT2}, 16')
    g(f's_mul_i32 s{sT3}, s{sT2}, 18')
    g(f's_sub_u32 s{sT0}, s{sT0}, s{sT3}')
    g(f's_mul_i32 s{sT2}, s{sT2}, 6')
    g(f's_add_u32 s{sT1}, s{sT1}, s{sT2}')
    g(f's_lshl_b32 s{sT1}, s{sT1}, 5')
    g(f'v_and_b32 v{a}, 15, v{vLane}')
    g(f'v_lshrrev_b32 v{b}, 4, v{vLane}')
    g(f'v_lshrrev_b32 v{c}, 1, v{b}')
    g(f'v_mul_u32_u24 v{c}, 18, v{c}')
    g(f'v_and_b32 v{val}, 1, v{b}')
    g(f'v_lshl_add_u32 v{c}, v{val}, 3, v{c}')
    g(f'v_mul_u32_u24 v{b}, 72, v{b}')
    g(f's_cmp_ge_u32 s{sT0}, 16')
    g(f's_cselect_b64 vcc, -1, 0')
    g(f'v_cndmask_b32 v{c}, v{c}, v{b}, vcc')
    g(f'v_mul_u32_u24 v{c}, 1152, v{c}')
    g(f'v_lshl_add_u32 v{c}, v{a}, 1, v{c}')
    g(f's_mul_i32 s{sT2}, s{sT0}, {36*1152}')
    g(f's_sub_u32 s{sT3}, s{sT0}, 16')
    g(f's_mul_i32 s{sT3}, s{sT3}, {16*18*1152}')
    g(f's_add_u32 s{sT3}, s{sT3}, {16*1152}')
    g(f's_cmp_ge_u32 s{sT0}, 16')
    g(f's_cselect_b32 s{sT0}, s{sT3}, s{sT2}')
    g(f's_mov_b32 s{sT2}, 1152')
    g(f's_cselect_b32 s{sT2}, {17*1152}, s{sT2}')
    g(f's_add_u32 s{sT0}, s{sT0}, s{sT1}')
    for e in range(8):
        g(f'buffer_load_ushort v{val+e}, v{c}, s[{SW}:{SW+3}], s{sT0} offen')
        if e < 7:
            if e % 2 == 0: g(f's_add_u32 s{sT0}, s{sT0}, 1152')
            else: g(f's_add_u32 s{sT0}, s{sT0}, s{sT2}')
    return vb
def wot_store(g, SWS, sIdx, sT0, vLane, vb):
    a = vb; val = vb + 4; out = vb + 12
    g(f'v_lshlrev_b32 v{a}, 4, v{vLane}')
    g(f's_lshl_b32 s{sT0}, s{sIdx}, 10')
    g(f's_add_u32 s{sT0}, s{sT0}, {WOT_OFF}')
    for k in range(4): g(f'v_lshl_or_b32 v{out+k}, v{val+2*k+1}, 16, v{val+2*k}')
    g(f'buffer_store_dwordx4 v[{out}:{out+3}], v{a}, s[{SWS}:{SWS+3}], s{sT0} offen')

def gen_outproj(g, done_label, opts={}):
    SWS, SO = 4, 8
    sWave, sTw, sFh, sMt, sNt, sT0, sT1, sT2, sX, sW = range(16, 26)
    sGA, sGB, sMA, sMB, sPh, sA, sB, sSA = range(26, 34)
    srd(g, SWS, P_WS); srd(g, SO, P_OUT)
    V = Regs(1, 128)
    vLane = V.alloc(); vG = V.alloc(); vI = V.alloc(); vDm = V.alloc()
    vXr = V.alloc(2); vWr = V.alloc(2); vEw = V.alloc()
    vT = [V.alloc() for _ in range(6)]
    acc = V.alloc(12, 4); fr = [V.alloc(16, 4) for _ in range(3)]; xe = V.alloc(2)
    NP, SPP, NB = 6, 3, 4
    PB = SPP * STAGE
    g(f'''v_lshrrev_b32 v{vT[0]}, 6, v0
v_and_b32 v{vLane}, 63, v0
v_readfirstlane_b32 s{sWave}, v{vT[0]}
v_lshlrev_b32 v{vDm}, 4, v{vLane}
s_and_b32 s{sT0}, s2, 7
s_lshr_b32 s{sT1}, s2, 3
s_lshl_b32 s{sMt}, s{sT0}, 2
s_and_b32 s{sT2}, s{sT1}, 3
s_add_u32 s{sMt}, s{sMt}, s{sT2}
s_lshr_b32 s{sNt}, s{sT1}, 2
s_add_u32 s{sPh}, s{sNt}, s{sT2}
s_cmp_ge_u32 s{sPh}, 6
s_cselect_b32 s{sA}, 6, 0
s_sub_u32 s{sPh}, s{sPh}, s{sA}
s_lshl_b32 s{sX}, s{sMt}, 11
s_add_u32 s{sX}, s{sX}, {OM_OFF}
s_mul_i32 s{sW}, s{sNt}, {18*WB}
s_add_u32 s{sW}, s{sW}, {WOT_OFF}''')
    g(f'''s_lshl_b32 s{sA}, s{sWave}, 10
s_add_u32 s{sGA}, s{sW}, s{sA}
s_add_u32 s{sMA}, s{sA}, {XB}
s_mov_b32 s{sSA}, {WB}
s_and_b32 s{sB}, s{sWave}, 1
s_lshl_b32 s{sB}, s{sB}, 10
s_lshr_b32 s{sA}, s{sWave}, 1
s_mul_i32 s{sMB}, s{sA}, {STAGE}
s_add_u32 s{sMB}, s{sMB}, s{sB}
s_add_u32 s{sMB}, s{sMB}, 2048
s_lshl_b32 s{sGB}, s{sA}, 17
s_add_u32 s{sGB}, s{sGB}, s{sB}
s_add_u32 s{sGB}, s{sGB}, 65536
s_add_u32 s{sGB}, s{sGB}, s{sX}
s_add_u32 s{sA}, s{sX}, s{sB}
s_cmp_ge_u32 s{sWave}, 6
s_cselect_b32 s{sGA}, s{sA}, s{sGA}
s_cselect_b32 s{sMA}, s{sB}, s{sMA}
s_cselect_b32 s{sSA}, 131072, s{sSA}
s_cselect_b32 s{sGB}, s{sA}, s{sGB}
s_cselect_b32 s{sMB}, s{sB}, s{sMB}
s_mul_i32 s{sT0}, s{sPh}, {SPP}
s_mul_i32 s{sA}, s{sT0}, s{sSA}
s_add_u32 s{sGA}, s{sGA}, s{sA}
s_lshl_b32 s{sA}, s{sT0}, 17
s_add_u32 s{sGB}, s{sGB}, s{sA}''')
    g('s_waitcnt lgkmcnt(0)')
    srd_fin(g, SWS, WS_USED); srd_fin(g, SO, L*2*D*2)
    def issue(i):
        buf = i % NB
        for k_ in range(SPP):
            g(f's_add_u32 m0, s{sMA}, {buf*PB + k_*STAGE}')
            g(f's_mov_b32 s{sA}, s{sGA}')
            g(f'buffer_load_dwordx4 v{vDm}, s[{SWS}:{SWS+3}], s{sA} offen lds')
            g(f's_add_u32 s{sGA}, s{sGA}, s{sSA}')
        g(f's_add_u32 m0, s{sMB}, {buf*PB}')
        g(f's_mov_b32 s{sA}, s{sGB}')
        g(f'buffer_load_dwordx4 v{vDm}, s[{SWS}:{SWS+3}], s{sA} offen lds')
        g(f's_add_u32 s{sGB}, s{sGB}, {SPP*131072}')
        g(f's_add_u32 s{sPh}, s{sPh}, 1')
        g(f's_cmp_eq_u32 s{sPh}, {NP}')
        g(f's_cselect_b32 s{sPh}, 0, s{sPh}')
        g(f's_mul_i32 s{sB}, s{sSA}, 18')
        g(f's_cselect_b32 s{sA}, {18*131072}, 0')
        g(f's_cselect_b32 s{sB}, s{sB}, 0')
        g(f's_sub_u32 s{sGB}, s{sGB}, s{sA}')
        g(f's_sub_u32 s{sGA}, s{sGA}, s{sB}')
    stamp(g, opts, 'op', 0)
    issue(0)
    g('s_barrier')
    issue(1)
    stamp(g, opts, 'op', 1)
    g(f'''v_lshrrev_b32 v{vG}, 4, v{vLane}
v_and_b32 v{vI}, 15, v{vLane}
s_and_b32 s{sTw}, s{sWave}, 3
s_lshr_b32 s{sFh}, s{sWave}, 2
v_lshrrev_b32 v{vT[0]}, 1, v{vG}
v_lshlrev_b32 v{vT[0]}, 11, v{vT[0]}
s_lshl_b32 s{sT0}, s{sTw}, 4
v_add_u32 v{vT[1]}, s{sT0}, v{vI}
v_lshl_add_u32 v{vT[0]}, v{vT[1]}, 5, v{vT[0]}
v_and_b32 v{vT[2]}, 1, v{vG}
v_lshl_add_u32 v{vXr}, v{vT[2]}, 4, v{vT[0]}
v_add_u32 v{vXr+1}, {2*PB}, v{vXr}
s_mul_i32 s{sT0}, s{sFh}, 3072
s_add_u32 s{sT0}, s{sT0}, {XB}
v_add_u32 v{vWr}, s{sT0}, v{vDm}
v_add_u32 v{vWr+1}, {2*PB}, v{vWr}
v_mul_u32_u24 v{vT[0]}, {RSO}, v{vT[1]}
v_lshl_add_u32 v{vT[0]}, v{vG}, 3, v{vT[0]}
s_mul_i32 s{sT0}, s{sFh}, 96
v_add_u32 v{vEw}, s{sT0}, v{vT[0]}''')
    def reads(i, s, fs):
        buf = i % NB; bank = buf // 2; sb = (buf % 2) * PB + s * STAGE
        out = [f'ds_read_b128 v[{fs}:{fs+3}], v{vXr+bank} offset:{sb}']
        for c in range(3):
            out.append(f'ds_read_b128 v[{fs+4+4*c}:{fs+4+4*c+3}], v{vWr+bank} offset:{sb + c*1024}')
        return out
    def compute(i):
        for s in range(SPP):
            for l in reads(i, s, fr[s]): g(l)
        for s in range(SPP):
            g(f's_waitcnt lgkmcnt({4*(SPP-1-s)})')
            fs = fr[s]
            for c in range(3):
                C = '0' if (i == 0 and s == 0) else f'v[{acc+4*c}:{acc+4*c+3}]'
                g(f'v_mfma_f32_16x16x32_bf16 v[{acc+4*c}:{acc+4*c+3}], v[{fs+4+4*c}:{fs+4+4*c+3}], v[{fs}:{fs+3}], {C}')
    issued = 2
    for i in range(NP):
        g(f's_waitcnt vmcnt({4*(issued-1-i)})')
        g('s_barrier')
        if i == 0: stamp(g, opts, 'op', 2)
        while issued < NP and issued <= i + 2:
            issue(issued); issued += 1
        compute(i)
        if i in (0, 1, 3): stamp(g, opts, 'op', {0: 3, 1: 4, 3: 5}[i])
    stamp(g, opts, 'op', 6)
    ST = 2 * PB
    for c in range(3):
        a = acc + 4*c
        g(f'v_cvt_pk_bf16_f32 v{a}, v{a}, v{a+1}')
        g(f'v_cvt_pk_bf16_f32 v{a+1}, v{a+2}, v{a+3}')
        g(f'ds_write_b64 v{vEw}, v[{a}:{a+1}] offset:{ST + 32*c}')
    for u in range(2):
        g(f'''v_add_u32 v{vT[0]}, {64*u}, v{vLane}
v_mul_u32_u24 v{vT[1]}, 5462, v{vT[0]}
v_lshrrev_b32 v{vT[1]}, 16, v{vT[1]}
v_mul_u32_u24 v{vT[2]}, 12, v{vT[1]}
v_sub_u32 v{vT[2]}, v{vT[0]}, v{vT[2]}
s_lshl_b32 s{sT0}, s{sWave}, 3
v_add_u32 v{vT[1]}, s{sT0}, v{vT[1]}
v_mul_u32_u24 v{vT[3]}, {RSO}, v{vT[1]}
v_lshl_add_u32 v{vT[4+u]}, v{vT[2]}, 4, v{vT[3]}
v_mul_u32_u24 v{vT[3]}, 2304, v{vT[1]}
v_lshl_add_u32 v{xe+u}, v{vT[2]}, 4, v{vT[3]}''')
    g(f'''s_mul_i32 s{sT0}, s{sMt}, {64*2304}
s_mul_i32 s{sT1}, s{sNt}, 192
s_add_u32 s{sT0}, s{sT0}, s{sT1}
s_add_u32 s{sT0}, s{sT0}, 1152''')
    g('s_waitcnt lgkmcnt(0)')
    g('s_barrier')
    g(f'ds_read_b128 v[{fr[0]}:{fr[0]+3}], v{vT[4]} offset:{ST}')
    g(f'ds_read_b128 v[{fr[0]+4}:{fr[0]+7}], v{vT[5]} offset:{ST}')
    g('s_waitcnt lgkmcnt(1)')
    g(f'buffer_store_dwordx4 v[{fr[0]}:{fr[0]+3}], v{xe}, s[{SO}:{SO+3}], s{sT0} offen')
    g('s_waitcnt lgkmcnt(0)')
    set_exec(g, (1 << 32) - 1)
    g(f'buffer_store_dwordx4 v[{fr[0]+4}:{fr[0]+7}], v{xe+1}, s[{SO}:{SO+3}], s{sT0} offen')
    g('s_mov_b64 exec, -1')
    stamp(g, opts, 'op', 7)
    g(f's_branch {done_label}')
```

```python
from asmlib import *
from layout import *
import struct
def f32bits(x): return struct.unpack('<I', struct.pack('<f', x))[0]
LOG2E = 1.4426950408889634
ROWB = 272
SCR = 16 * ROWB
TASK_LDS = 2 * SCR
TAB_LDS = 1344

class KGen:
    def __init__(self, vfree, vlimit, sfree, vLane):
        V = Regs(vfree, vlimit)
        self.vLane = vLane
        self.prm = [V.alloc() for _ in range(2)]
        self.cc = [V.alloc(2) for _ in range(2)]
        self.al = V.alloc(); self.be = V.alloc(); self.dt = V.alloc()
        self.Cp = V.alloc(2, 2); self.Co = V.alloc(2, 2)
        self.E1 = V.alloc(2, 2); self.E8 = V.alloc(2, 2); self.H1 = V.alloc(2, 2)
        self.Hs = [V.alloc(2, 2), V.alloc(2, 2)]
        self.W = [V.alloc(2, 2) for _ in range(8)]
        self.Z = [V.alloc(2, 2) for _ in range(4)]; self.T = [V.alloc(2, 2) for _ in range(2)]; self.pk = V.alloc(4)
        self.Yf = V.alloc(16, 4); self.Xf = V.alloc(16, 4); self.acc = V.alloc(12, 4)
        self.vWr = V.alloc(); self.vRd = V.alloc(); self.vA = [V.alloc() for _ in range(4)]
        self.t = [V.alloc() for _ in range(3)]
        self.vend = V.next
        self.sB = [KA(A_LAR), KA(A_AIM), KA(A_CR), KA(A_CI), KA(A_LDT)]
        self.sCh, self.sHf, self.sLB, self.sTB, self.sT0, self.sT1, self.sScale, self.sT2 = range(sfree, sfree+8)
    def loads(self, g):
        k = self
        g(f's_lshl_b32 s{k.sT0}, s{k.sCh}, 8')
        g(f's_lshl_b32 s{k.sT1}, s{k.sHf}, 7')
        g(f'v_lshlrev_b32 v{k.t[0]}, 1, v{k.vLane}')
        g(f's_add_u32 s{k.sT2}, s{k.sT0}, s{k.sT1}')
        g(f'v_add_u32 v{k.t[1]}, s{k.sT2}, v{k.t[0]}')
        g(f's_xor_b32 s{k.sT1}, s{k.sT1}, 128')
        g(f's_add_u32 s{k.sT2}, s{k.sT0}, s{k.sT1}')
        g(f'v_add_u32 v{k.t[2]}, s{k.sT2}, v{k.t[0]}')
        g(f's_lshl_b32 s{k.sT0}, s{k.sCh}, 1')
        g(f'v_mov_b32 v{k.t[0]}, s{k.sT0}')
        g(f'global_load_ushort v{k.prm[0]}, v{k.t[1]}, s[{k.sB[0]}:{k.sB[0]+1}]')
        g(f'global_load_ushort v{k.prm[1]}, v{k.t[1]}, s[{k.sB[1]}:{k.sB[1]+1}]')
        for c in range(2):
            g(f'global_load_ushort v{k.cc[c]}, v{k.t[1]}, s[{k.sB[2+c]}:{k.sB[2+c]+1}]')
            g(f'global_load_ushort v{k.cc[c]+1}, v{k.t[2]}, s[{k.sB[2+c]}:{k.sB[2+c]+1}]')
        g(f'global_load_ushort v{k.dt}, v{k.t[0]}, s[{k.sB[4]}:{k.sB[4]+1}]')
        return 7
    def body(self):
        k = self; L = []
        g = L.append
        vT = k.t; dt = k.dt; lar, aim = k.prm
        sT0, sT1 = k.sT0, k.sT1
        g(f'v_lshlrev_b32 v{k.vWr}, 2, v{k.vLane}')
        g(f'v_and_b32 v{vT[0]}, 15, v{k.vLane}')
        g(f'v_add_u32 v{k.vWr}, s{k.sLB}, v{k.vWr}')
        g(f'v_mul_u32_u24 v{k.vRd}, {ROWB}, v{vT[0]}')
        g(f'v_lshrrev_b32 v{vT[0]}, 4, v{k.vLane}')
        g(f'v_lshlrev_b32 v{dt}, 16, v{dt}')
        g(f'v_lshl_add_u32 v{k.vRd}, v{vT[0]}, 4, v{k.vRd}')
        g(f'v_mul_f32 v{dt}, {f32bits(LOG2E):#x}, v{dt}')
        g(f'v_add_u32 v{k.vRd}, s{k.sLB}, v{k.vRd}')
        g(f'v_lshlrev_b32 v{lar}, 16, v{lar}')
        g(f'v_exp_f32 v{dt}, v{dt}')
        g(f'v_mul_f32 v{lar}, {f32bits(LOG2E):#x}, v{lar}')
        g(f'v_lshlrev_b32 v{aim}, 16, v{aim}')
        g(f'v_exp_f32 v{lar}, v{lar}')
        g(f'v_cvt_pk_bf16_f32 v{dt}, v{dt}, v{dt}')
        for c in range(2):
            for h in range(2): g(f'v_lshlrev_b32 v{k.cc[c]+h}, 16, v{k.cc[c]+h}')
        g(f'v_lshlrev_b32 v{dt}, 16, v{dt}')
        g(f'v_cvt_pk_bf16_f32 v{lar}, v{lar}, v{lar}')
        g(f'v_mul_f32 v{aim}, v{aim}, v{dt}')
        g(f'v_lshlrev_b32 v{lar}, 16, v{lar}')
        for h, dst in ((0, k.Cp), (1, k.Co)):
            for c in range(2): g(f'v_mul_f32 v{dst+c}, v{k.cc[c]+h}, v{dt}')
        g(f'v_mul_f32 v{lar}, v{lar}, v{dt}')
        g(f'v_mul_f32 v{k.be}, 0.15915494, v{aim}')
        g(f'v_mul_f32 v{k.al}, {f32bits(-LOG2E):#x}, v{lar}')
        m = vT[1]
        g(f'v_max_f32 v{m}, |v{k.Cp}|, |v{k.Cp+1}|')
        g(f'v_max3_f32 v{m}, |v{k.Co}|, |v{k.Co+1}|, v{m}')
        ps = [(k.E1, 1.0), (k.E8, 8.0), (k.H1, 128.0)]
        tm = [k.Z[0], k.Z[1], k.Z[2]]
        red = []
        for sh in (1, 2, 4, 8):
            red.append([f'v_mov_b32_dpp v{vT[2]}, v{m} row_ror:{sh} row_mask:0xf bank_mask:0xf', f'v_max_f32 v{m}, v{m}, v{vT[2]}'])
        for i, ((dst, p), t) in enumerate(zip(ps, tm)):
            g(f'v_mul_f32 v{t}, {f32bits(p):#x}, v{k.al}')
            g(f'v_mul_f32 v{t+1}, {f32bits(p):#x}, v{k.be}')
            g(red[i][0]); g(f'v_exp_f32 v{t}, v{t}'); g(red[i][1])
            g(f'v_fract_f32 v{t+1}, v{t+1}')
        g(red[3][0])
        for (dst, p), t in zip(ps, tm):
            g(f'v_cos_f32 v{dst}, v{t+1}')
            g(f'v_sin_f32 v{dst+1}, v{t+1}')
        g(red[3][1])
        for (dst, p), t in zip(ps, tm):
            g(f'v_mul_f32 v{dst}, v{dst}, v{t}')
            g(f'v_mul_f32 v{dst+1}, v{dst+1}, v{t}')
        g(f'v_readlane_b32 s{sT0}, v{m}, 0')
        g(f'v_readlane_b32 s{sT1}, v{m}, 16')
        g(f's_max_u32 s{sT0}, s{sT0}, s{sT1}')
        g(f'v_readlane_b32 s{sT1}, v{m}, 32')
        g(f's_max_u32 s{sT0}, s{sT0}, s{sT1}')
        g(f'v_readlane_b32 s{sT1}, v{m}, 48')
        g(f's_max_u32 s{sT0}, s{sT0}, s{sT1}')
        g(f's_lshr_b32 s{sT0}, s{sT0}, 23')
        g(f's_max_u32 s{sT0}, s{sT0}, 2')
        g(f's_min_u32 s{sT0}, s{sT0}, 252')
        g(f's_add_u32 s{k.sScale}, s{sT0}, 1')
        g(f's_lshl_b32 s{k.sScale}, s{k.sScale}, 23')
        g(f's_sub_u32 s{sT0}, 254, s{sT0}')
        g(f's_lshl_b32 s{sT0}, s{sT0}, 23')
        g(f'v_mul_f32 v{k.Cp}, s{sT0}, v{k.Cp}')
        g(f'v_mul_f32 v{k.Cp+1}, s{sT0}, v{k.Cp+1}')
        cnt = [0]
        T, Z, W, pk, vWr = k.T, k.Z, k.W, k.pk, k.vWr
        def put2(srcA, rowA, srcB, rowB, off, neg=False):
            r = pk + 2 * (cnt[0] & 1); cnt[0] += 1
            n = '-' if neg else ''
            g(f'v_cvt_pk_f16_f32 v{r}, v{srcA}, {n}v{srcA+1}')
            g(f'v_cvt_pk_f16_f32 v{r+1}, v{srcB}, {n}v{srcB+1}')
            g(f'ds_write_b32 v{vWr}, v{r} offset:{off + rowA*ROWB}')
            g(f'ds_write_b32 v{vWr}, v{r+1} offset:{off + rowB*ROWB}')
        def put1(src, row, off):
            r = pk + 2 * (cnt[0] & 1); cnt[0] += 1
            g(f'v_cvt_pk_f16_f32 v{r}, v{src}, v{src+1}')
            g(f'ds_write_b32 v{vWr}, v{r} offset:{off + row*ROWB}')
        def pmul(t, a, b): g(f'v_pk_mul_f32 v[{t}:{t+1}], v[{a}:{a+1}], v[{b}:{b+1}] op_sel_hi:[1,0]')
        def pfma(z, a, b, t): g(f'v_pk_fma_f32 v[{z}:{z+1}], v[{a}:{a+1}], v[{b}:{b+1}], v[{t}:{t+1}] op_sel:[1,1,0] op_sel_hi:[0,1,1] neg_lo:[1,0,0]')
        def cmul2(z0, a0, b0, z1, a1, b1):
            pmul(T[0], a0, b0); pmul(T[1], a1, b1); pfma(z0, a0, b0, T[0]); pfma(z1, a1, b1, T[1])
        def mm(tile):
            for q in range(4): g(f'ds_read_b128 v[{k.Xf+4*q}:{k.Xf+4*q+3}], v{k.vRd} offset:{SCR + 64*q}')
            return [f'v_mfma_f32_16x16x32_f16 v[{k.acc+4*tile}:{k.acc+4*tile+3}], v[{k.Xf+4*q}:{k.Xf+4*q+3}], v[{k.Yf+4*q}:{k.Yf+4*q+3}], ' +
                    ('0' if q == 0 else f'v[{k.acc+4*tile}:{k.acc+4*tile+3}]') for q in range(4)]
        E1, E8, H1 = k.E1, k.E8, k.H1
        E16 = k.Hs[0]
        g(f'v_mov_b32 v{Z[0]}, 1.0'); g(f'v_mov_b32 v{Z[0]+1}, 0')
        g(f'v_mov_b32 v{W[0]}, v{k.Cp}'); g(f'v_mov_b32 v{W[0]+1}, v{k.Cp+1}')
        cmul2(E16, E8, E8, W[1], W[0], E1)
        put2(Z[0], 0, E8, 1, 0, True)
        g(f'v_mov_b32 v{Z[0]}, v{E16}'); g(f'v_mov_b32 v{Z[0]+1}, v{E16+1}')
        evr, odr = [Z[0], Z[2]], [Z[1], Z[3]]
        cmul2(odr[0], E8, E16, W[2], W[1], E1)
        put2(evr[0], 2, odr[0], 3, 0, True)
        cur = 0
        for b in range(4, 16, 2):
            nx = 1 - cur
            cmul2(evr[nx], evr[cur], E16, odr[nx], odr[cur], E16)
            put2(evr[nx], b, odr[nx], b+1, 0, True)
            cur = nx
        for q in range(4): g(f'ds_read_b128 v[{k.Yf+4*q}:{k.Yf+4*q+3}], v{k.vRd} offset:{64*q}')
        H2 = k.Hs[0]; H3 = k.Hs[1]
        cmul2(W[3], W[2], E1, H2, H1, H1)
        cmul2(W[4], W[3], E1, H3, H2, H1)
        cmul2(W[5], W[4], E1, Z[0], W[0], H1)
        cmul2(W[6], W[5], E1, Z[1], W[1], H1)
        X = SCR
        put2(W[0], 0, W[1], 1, X); put2(W[2], 2, W[3], 3, X)
        put2(Z[0], 8, Z[1], 9, X)
        cmul2(W[7], W[6], E1, Z[2], W[2], H1)
        put2(W[4], 4, W[5], 5, X); put2(W[6], 6, W[7], 7, X)
        cmul2(Z[3], W[3], H1, Z[0], W[4], H1)
        put2(Z[2], 10, Z[3], 11, X)
        cmul2(Z[1], W[5], H1, Z[2], W[6], H1)
        put2(Z[0], 12, Z[1], 13, X)
        cmul2(Z[3], W[7], H1, Z[0], W[0], H2)
        put2(Z[2], 14, Z[3], 15, X)
        m0_ = mm(0)
        cmul2(Z[1], W[2], H2, Z[2], W[4], H2)
        put2(Z[0], 0, Z[1], 1, X)
        cmul2(Z[3], W[6], H2, Z[0], W[0], H3)
        put2(Z[2], 2, Z[3], 3, X)
        g('NEXT')
        for l in m0_: g(l)
        cmul2(Z[1], W[2], H3, Z[2], W[4], H3)
        put2(Z[0], 4, Z[1], 5, X)
        cmul2(Z[3], W[6], H3, H2, H3, H1)
        put2(Z[2], 6, Z[3], 7, X)
        Ha, Hb = H2, H3
        for a in range(4):
            cmul2(Z[0], W[0], Ha, Z[1], W[4], Ha)
            pmul(T[0], Ha, H1); pfma(Hb, Ha, H1, T[0])
            put2(Z[0], 8+2*a, Z[1], 9+2*a, X)
            Ha, Hb = Hb, Ha
        m1_ = mm(1)
        cmul2(Z[0], W[0], Ha, Hb, Ha, H1)
        cmul2(Z[1], W[0], Hb, Ha, Hb, H1)
        put2(Z[0], 0, Z[1], 1, X)
        g('NEXT')
        for l in m1_: g(l)
        for a in range(2, 8, 2):
            cmul2(Z[0], W[0], Ha, Hb, Ha, H1)
            cmul2(Z[1], W[0], Hb, Ha, Hb, H1)
            put2(Z[0], a, Z[1], a+1, X)
        pmul(T[0], W[0], Ha); pfma(Z[0], W[0], Ha, T[0])
        put1(Z[0], 8, X)
        m2_ = mm(2)
        g('NEXT')
        for l in m2_: g(l)
        return L
    def tail1(self, g):
        k = self
        L1 = g.newlabel('kg_t1')
        g(f'v_lshlrev_b32 v{k.t[2]}, 4, v{k.vLane}')
        g(f'v_add_u32 v{k.t[2]}, s{k.sLB}, v{k.t[2]}')
        g(f's_cmp_eq_u32 s{k.sHf}, 0')
        g(f's_cbranch_scc1 {L1}')
        for t in range(3): g(f'ds_write_b128 v{k.t[2]}, v[{k.acc+4*t}:{k.acc+4*t+3}] offset:{1024*t}')
        g.label(L1)
    def publish(self, g):
        k = self
        g(f'v_lshlrev_b32 v{k.t[2]}, 4, v{k.vLane}')
        g(f'v_add_u32 v{k.t[2]}, s{k.sLB}, v{k.t[2]}')
        g(f'v_mov_b32 v{k.t[0]}, s{k.sScale}')
        g(f'v_mov_b32 v{k.t[1]}, s{k.sLB}')
        for t in range(3): g(f'ds_write_b128 v{k.t[2]}, v[{k.acc+4*t}:{k.acc+4*t+3}] offset:{1024*t}')
        g(f'ds_write_b32 v{k.t[1]}, v{k.t[0]} offset:3072')
    def fetch(self, g):
        k = self
        g(f'v_lshlrev_b32 v{k.t[2]}, 4, v{k.vLane}')
        g(f'v_add_u32 v{k.t[2]}, s{k.sLB}, v{k.t[2]}')
        g(f'v_mov_b32 v{k.t[1]}, s{k.sLB}')
        for t in range(3): g(f'ds_read_b128 v[{k.acc+4*t}:{k.acc+4*t+3}], v{k.t[2]} offset:{1024*t}')
        g(f'ds_read_b32 v{k.t[0]}, v{k.t[1]} offset:3072')
        g('s_waitcnt lgkmcnt(0)')
        g(f'v_readfirstlane_b32 s{k.sScale}, v{k.t[0]}')
    def tail2(self, g):
        k = self; vT = k.t; vA = k.vA; acc = k.acc; Xf = k.Xf
        vb, vq, a, b = k.Yf, k.Yf+1, k.Yf+2, k.Yf+3
        L2 = g.newlabel('kg_t2')
        g(f's_cmp_eq_u32 s{k.sHf}, 1')
        g(f's_cbranch_scc1 {L2}')
        for t in range(3): g(f'ds_read_b128 v[{Xf+4*t}:{Xf+4*t+3}], v{vT[2]} offset:{TASK_LDS + 1024*t}')
        g(f'v_and_b32 v{vb}, 15, v{k.vLane}')
        g(f'v_lshrrev_b32 v{vq}, 4, v{k.vLane}')
        g(f'v_lshrrev_b32 v{a}, 1, v{vq}')
        g(f'v_lshlrev_b32 v{a}, 7, v{a}')
        g(f'v_and_b32 v{b}, 1, v{vq}')
        g(f'v_lshl_add_u32 v{a}, v{b}, 2, v{a}')
        g(f'v_lshl_add_u32 v{vA[0]}, v{vb}, 3, v{a}')
        g(f'v_lshlrev_b32 v{a}, 6, v{vq}')
        g(f'v_lshl_add_u32 v{b}, v{vb}, 1, v{a}')
        g(f'v_add_u32 v{vA[3]}, v{a}, v{vb}')
        g(f'v_lshl_add_u32 v{a}, v{vb}, 2, v{a}')
        g(f'v_cmp_gt_u32 vcc, 2, v{vq}')
        g(f'v_cndmask_b32 v{vA[1]}, v{b}, v{a}, vcc')
        g(f'v_add_u32 v{vA[1]}, 256, v{vA[1]}')
        g(f'v_add_u32 v{vA[3]}, 512, v{vA[3]}')
        g(f'v_mov_b32 v{a}, 64'); g(f'v_mov_b32 v{b}, 4')
        g(f'v_cndmask_b32 v{vA[2]}, v{a}, v{b}, vcc')
        for q in (0, 1, 3):
            g(f'v_lshlrev_b32 v{vA[q]}, 1, v{vA[q]}')
            g(f'v_add_u32 v{vA[q]}, s{k.sTB}, v{vA[q]}')
        g(f'v_add_u32 v{vA[2]}, v{vA[2]}, v{vA[1]}')
        g('s_waitcnt lgkmcnt(0)')
        for r in range(12): g(f'v_add_f32 v{acc+r}, v{acc+r}, v{Xf+r}')
        for t in range(3):
            for r in range(4): g(f'v_mul_f32 v{acc+4*t+r}, s{k.sScale}, v{acc+4*t+r}')
            g(f'v_cvt_pk_bf16_f32 v{acc+4*t}, v{acc+4*t}, v{acc+4*t+1}')
            g(f'v_cvt_pk_bf16_f32 v{acc+4*t+1}, v{acc+4*t+2}, v{acc+4*t+3}')
        g(f'ds_write_b16 v{vA[0]}, v{acc}')
        g(f'ds_write_b16_d16_hi v{vA[0]}, v{acc} offset:2')
        g(f'ds_write_b16 v{vA[0]}, v{acc+1} offset:4')
        g(f'ds_write_b16_d16_hi v{vA[0]}, v{acc+1} offset:6')
        g(f'ds_write_b16 v{vA[1]}, v{acc+4}')
        g(f'ds_write_b16_d16_hi v{vA[1]}, v{acc+4} offset:2')
        g(f'ds_write_b16 v{vA[2]}, v{acc+5}')
        g(f'ds_write_b16_d16_hi v{vA[2]}, v{acc+5} offset:2')
        g('s_mov_b32 exec_hi, 0xffff')
        g(f'ds_write_b16 v{vA[3]}, v{acc+8}')
        g('s_mov_b32 exec_hi, 0')
        g(f'ds_write_b16_d16_hi v{vA[3]}, v{acc+8} offset:32')
        g(f'ds_write_b16 v{vA[3]}, v{acc+9} offset:64')
        g(f'ds_write_b16_d16_hi v{vA[3]}, v{acc+9} offset:96')
        g('s_mov_b64 exec, -1')
        g.label(L2)
    def tail3(self, g, SWS):
        k = self
        L3 = g.newlabel('kg_t3')
        g(f's_cmp_eq_u32 s{k.sHf}, 0')
        g(f's_cbranch_scc1 {L3}')
        g(f'v_lshlrev_b32 v{k.t[0]}, 4, v{k.vLane}')
        g(f'v_add_u32 v{k.t[1]}, s{k.sTB}, v{k.t[0]}')
        g(f'ds_read_b128 v[{k.Xf}:{k.Xf+3}], v{k.t[1]}')
        g(f'ds_read_b128 v[{k.Xf+4}:{k.Xf+7}], v{k.t[1]} offset:1024')
        g(f's_mul_i32 s{k.sT0}, s{k.sCh}, {KTAB_STRIDE}')
        g(f's_add_u32 s{k.sT0}, s{k.sT0}, {KTAB_OFF}')
        g('s_waitcnt lgkmcnt(0)')
        g(f'buffer_store_dwordx4 v[{k.Xf}:{k.Xf+3}], v{k.t[0]}, s[{SWS}:{SWS+3}], s{k.sT0} offen')
        g(f's_mov_b64 exec, {(1 << 20) - 1:#x}')
        g(f'buffer_store_dwordx4 v[{k.Xf+4}:{k.Xf+7}], v{k.t[0]}, s[{SWS}:{SWS+3}], s{k.sT0} offen offset:1024')
        g('s_mov_b64 exec, -1')
        g.label(L3)

    def finish_chunks(self):
        k = self; vT = k.t; vA = k.vA; acc = k.acc; Xf = k.Xf
        vb, vq, a, b = k.Yf, k.Yf+1, k.Yf+2, k.Yf+3
        c0 = [f'v_lshlrev_b32 v{vT[2]}, 4, v{k.vLane}', f'v_add_u32 v{vT[2]}, s{k.sLB}, v{vT[2]}', f'v_mov_b32 v{vT[1]}, s{k.sLB}']
        c0 += [f'ds_read_b128 v[{acc+4*t}:{acc+4*t+3}], v{vT[2]} offset:{1024*t}' for t in range(3)]
        c0 += [f'ds_read_b32 v{vT[0]}, v{vT[1]} offset:3072']
        c0 += [f'ds_read_b128 v[{Xf+4*t}:{Xf+4*t+3}], v{vT[2]} offset:{TASK_LDS + 1024*t}' for t in range(3)]
        c1 = [f'v_and_b32 v{vb}, 15, v{k.vLane}', f'v_lshrrev_b32 v{vq}, 4, v{k.vLane}', f'v_lshrrev_b32 v{a}, 1, v{vq}', f'v_lshlrev_b32 v{a}, 7, v{a}',
              f'v_and_b32 v{b}, 1, v{vq}', f'v_lshl_add_u32 v{a}, v{b}, 2, v{a}', f'v_lshl_add_u32 v{vA[0]}, v{vb}, 3, v{a}', f'v_lshlrev_b32 v{a}, 6, v{vq}',
              f'v_lshl_add_u32 v{b}, v{vb}, 1, v{a}', f'v_add_u32 v{vA[3]}, v{a}, v{vb}', f'v_lshl_add_u32 v{a}, v{vb}, 2, v{a}', f'v_cmp_gt_u32 vcc, 2, v{vq}',
              f'v_cndmask_b32 v{vA[1]}, v{b}, v{a}, vcc', f'v_add_u32 v{vA[1]}, 256, v{vA[1]}', f'v_add_u32 v{vA[3]}, 512, v{vA[3]}',
              f'v_mov_b32 v{a}, 64', f'v_mov_b32 v{b}, 4', f'v_cndmask_b32 v{vA[2]}, v{a}, v{b}, vcc']
        for q in (0, 1, 3): c1 += [f'v_lshlrev_b32 v{vA[q]}, 1, v{vA[q]}', f'v_add_u32 v{vA[q]}, s{k.sTB}, v{vA[q]}']
        c1 += [f'v_add_u32 v{vA[2]}, v{vA[2]}, v{vA[1]}']
        c2 = [f'v_readfirstlane_b32 s{k.sScale}, v{vT[0]}']
        c2 += [f'v_add_f32 v{acc+r}, v{acc+r}, v{Xf+r}' for r in range(12)]
        for t in range(3):
            c2 += [f'v_mul_f32 v{acc+4*t+r}, s{k.sScale}, v{acc+4*t+r}' for r in range(4)]
            c2 += [f'v_cvt_pk_bf16_f32 v{acc+4*t}, v{acc+4*t}, v{acc+4*t+1}', f'v_cvt_pk_bf16_f32 v{acc+4*t+1}, v{acc+4*t+2}, v{acc+4*t+3}']
        c3 = [f'ds_write_b16 v{vA[0]}, v{acc}', f'ds_write_b16_d16_hi v{vA[0]}, v{acc} offset:2', f'ds_write_b16 v{vA[0]}, v{acc+1} offset:4',
              f'ds_write_b16_d16_hi v{vA[0]}, v{acc+1} offset:6', f'ds_write_b16 v{vA[1]}, v{acc+4}', f'ds_write_b16_d16_hi v{vA[1]}, v{acc+4} offset:2',
              f'ds_write_b16 v{vA[2]}, v{acc+5}', f'ds_write_b16_d16_hi v{vA[2]}, v{acc+5} offset:2', 's_mov_b32 exec_hi, 0xffff',
              f'ds_write_b16 v{vA[3]}, v{acc+8}', 's_mov_b32 exec_hi, 0', f'ds_write_b16_d16_hi v{vA[3]}, v{acc+8} offset:32',
              f'ds_write_b16 v{vA[3]}, v{acc+9} offset:64', f'ds_write_b16_d16_hi v{vA[3]}, v{acc+9} offset:96', 's_mov_b64 exec, -1']
        return [c0, c1, c2, c3]
```

```python
from asmlib import *
from layout import *
from k_gemm1 import srd, srd_fin, set_exec, f32bits
import math
import k_gemm3, k_kgen

def transpose_pass(g, SSRC, SDST, sSrc, sDst, src_rowstride, dst_rowstride, vLane, vT, base, coalesced_store):
    A = base; B = base + 32
    for e in range(8):
        off = e * src_rowstride
        if off < 4096:
            g(f'buffer_load_dwordx4 v[{A+4*e}:{A+4*e+3}], v{vT[0]}, s[{SSRC}:{SSRC+3}], s{sSrc} offen offset:{off}')
        else:
            g(f'v_add_u32 v{vT[2]}, {off}, v{vT[0]}')
            g(f'buffer_load_dwordx4 v[{A+4*e}:{A+4*e+3}], v{vT[2]}, s[{SSRC}:{SSRC+3}], s{sSrc} offen')
    g('s_waitcnt vmcnt(0)')
    return A, B

def emit_8x8(g, A, B, sT0, sT1):
    g(f's_mov_b32 s{sT0}, 0x05040100')
    g(f's_mov_b32 s{sT1}, 0x07060302')
    for c in range(8):
        for k in range(4):
            sel = sT0 if c % 2 == 0 else sT1
            g(f'v_perm_b32 v{B+4*c+k}, v{A+4*(2*k+1)+(c>>1)}, v{A+4*(2*k)+(c>>1)}, s{sel}')

AUX_LDS = 6 * k_kgen.TASK_LDS + 3 * k_kgen.TAB_LDS
def gen_l1_aux(g, done_label, opts={}):
    SWS, SU, SWO = 4, 8, 12
    sWave, sT0, sT1, sT2, sT3, sA, sB, sF, sTd, sDoT, sF2 = range(16, 27)
    vLane = 1
    kg = k_kgen.KGen(132, 256, 76, vLane)
    g('v_lshrrev_b32 v2, 6, v0')
    g(f'v_and_b32 v{vLane}, 63, v0')
    g(f'v_readfirstlane_b32 s{sWave}, v2')
    load_kernargs(g, [A_LAR, A_AIM, A_CR, A_CI, A_LDT])
    g(f"""s_lshr_b32 s{sT0}, s{sWave}, 1
s_mul_i32 s{kg.sCh}, s2, 3
s_add_u32 s{kg.sCh}, s{kg.sCh}, s{sT0}
s_add_u32 s{kg.sCh}, s{kg.sCh}, 384
s_min_u32 s{kg.sCh}, s{kg.sCh}, 575
s_and_b32 s{kg.sHf}, s{sWave}, 1
s_mul_i32 s{kg.sLB}, s{sWave}, {k_kgen.TASK_LDS}
s_mul_i32 s{kg.sTB}, s{sT0}, {k_kgen.TAB_LDS}
s_add_u32 s{kg.sTB}, s{kg.sTB}, {6*k_kgen.TASK_LDS}""")
    g('s_waitcnt lgkmcnt(0)')
    kg.loads(g)
    load_kernargs(g, [A_U, B_WO, P_WS])
    g(f"""s_lshr_b32 s{sA}, s{sWave}, 1
s_lshl_b32 s{sA}, s{sA}, 6
s_add_u32 s{sA}, s{sA}, s2
s_cmp_lt_u32 s{sA}, 144
s_cselect_b32 s{sDoT}, 1, 0
s_lshr_b32 s{sB}, s{sA}, 4
s_lshl_b32 s{sB}, s{sB}, 1
s_and_b32 s{sT0}, s{sWave}, 1
s_add_u32 s{sB}, s{sB}, s{sT0}
s_and_b32 s{sA}, s{sA}, 15
s_mul_i32 s{sT0}, s{sA}, {128*1152}
s_lshl_b32 s{sT1}, s{sB}, 6
s_add_u32 s{sF2}, s{sT0}, s{sT1}
s_mul_i32 s{sTd}, s{sB}, {32*4096}
s_lshl_b32 s{sA}, s{sA}, 8
s_add_u32 s{sTd}, s{sTd}, s{sA}
s_add_u32 s{sTd}, s{sTd}, {UT_OFF}""")
    ta, tb, tc, td = 2, 3, 4, 5
    g(f'v_and_b32 v{tc}, 15, v{vLane}')
    g(f'v_lshrrev_b32 v{td}, 4, v{vLane}')
    g(f'v_mul_u32_u24 v{ta}, {8*1152}, v{tc}')
    g(f'v_lshl_add_u32 v{ta}, v{td}, 4, v{ta}')
    g(f'v_lshlrev_b32 v{tb}, 15, v{td}')
    g(f'v_lshl_add_u32 v{tb}, v{tc}, 4, v{tb}')
    g('s_waitcnt lgkmcnt(0)')
    srd_from(g, SWS, P_WS, WS_USED); srd_from(g, SU, A_U, L*D*2); srd_from(g, SWO, B_WO, D*D*2)
    A, B = 8, 40
    def tr_loads():
        LNT = g.newlabel('aux_notr')
        g(f's_cmp_eq_u32 s{sDoT}, 0')
        g(f's_cbranch_scc1 {LNT}')
        g(f's_mov_b32 s{sT0}, s{sF2}')
        for e in range(8):
            if e == 4: g(f's_add_u32 s{sT0}, s{sT0}, {4*1152}')
            g(f'buffer_load_dwordx4 v[{A+4*e}:{A+4*e+3}], v{ta}, s[{SU}:{SU+3}], s{sT0} offen offset:{(e % 4)*1152}')
        g.label(LNT)
    LMV = g.newlabel('aux_mv')
    g(f's_cmp_ge_u32 s{sWave}, 6')
    g(f's_cbranch_scc1 {LMV}')
    g('s_waitcnt vmcnt(0)')
    stamp(g, opts, 'aux', 0)
    body = kg.body()
    half = 200
    for l in body[:half]: g('s_waitcnt lgkmcnt(0)' if l == 'NEXT' else l)
    tr_loads()
    for l in body[half:]: g('s_waitcnt lgkmcnt(0)' if l == 'NEXT' else l)
    kg.tail1(g)
    LJ = g.newlabel('aux_j')
    g(f's_branch {LJ}')
    g.label(LMV)
    g(f's_lshl_b32 s{sF}, s2, 1')
    g(f's_add_u32 s{sF}, s{sF}, s{sWave}')
    g(f's_sub_u32 s{sF}, s{sF}, 6')
    for grp in range(2):
        idx = []
        for i in range(3):
            si = 27 + i
            g(f's_add_u32 s{si}, s{sF}, {128*(3*grp+i)}')
            g(f's_min_u32 s{si}, s{si}, 647')
            k_gemm3.wot_loads(g, SWO, si, (sT0, sT1, sT2, sT3), vLane, 8 + 16*i)
        g('s_waitcnt vmcnt(0)')
        for i in range(3): k_gemm3.wot_store(g, SWS, 27 + i, sT0, vLane, 8 + 16*i)
    g.label(LJ)
    stamp(g, opts, 'aux', 1)
    g('s_waitcnt lgkmcnt(0)')
    g('s_barrier')
    stamp(g, opts, 'aux', 2)
    LN2 = g.newlabel('aux_nok2')
    g(f's_cmp_ge_u32 s{sWave}, 6')
    g(f's_cbranch_scc1 {LN2}')
    kg.tail2(g)
    g.label(LN2)
    LNT2 = g.newlabel('aux_notr2')
    g(f's_cmp_eq_u32 s{sDoT}, 0')
    g(f's_cbranch_scc1 {LNT2}')
    g('s_waitcnt vmcnt(0)')
    emit_8x8(g, A, B, sT2, sT3)
    for c in range(8):
        g(f'buffer_store_dwordx4 v[{B+4*c}:{B+4*c+3}], v{tb}, s[{SWS}:{SWS+3}], s{sTd} offen')
        if c < 7: g(f's_add_u32 s{sTd}, s{sTd}, 4096')
    g.label(LNT2)
    g('s_waitcnt lgkmcnt(0)')
    g('s_barrier')
    stamp(g, opts, 'aux', 3)
    LN3 = g.newlabel('aux_nok3')
    g(f's_cmp_ge_u32 s{sWave}, 6')
    g(f's_cbranch_scc1 {LN3}')
    kg.tail3(g, SWS)
    g.label(LN3)
    g(f's_branch {done_label}')

CONV_CH = KIMG_STRIDE + 512 + 4096
CONV_LDS = 4 * CONV_CH + 4 * KTAB_STRIDE

def gen_expand(g, sRh, sTB, sLB, sT0, vLane, vT, fr):
    vO, vM, vAd = vT[0], vT[1], vT[2]
    t1, t0 = fr + 28, fr + 29
    g(f'v_lshlrev_b32 v{vO}, 4, v{vLane}')
    g(f'v_add_u32 v{vO}, s{sLB}, v{vO}')
    def st(D, it):
        g(f'ds_write_b128 v{vO}, v[{D}:{D+3}] offset:{1024*it}')
        g(f'ds_write_b128 v{vO}, v[{D+4}:{D+7}] offset:{KIMG_COPY + 1024*it}')
    LO, HI = 0x01000100, 0x03020302
    def perm(dst, a, b, sel):
        g(f's_mov_b32 s{sT0}, {sel:#x}')
        g(f'v_perm_b32 v{dst}, v{a}, v{b}, s{sT0}')
    LX1 = g.newlabel('ex_1'); LXE = g.newlabel('ex_e')
    g(f's_cmp_eq_u32 s{sRh}, 1')
    g(f's_cbranch_scc1 {LX1}')
    for it in range(2):
        p = fr + 24 + 2*it
        g(f'v_sub_u32 v{vM}, {255 - 64*it}, v{vLane}')
        g(f'v_lshlrev_b32 v{vAd}, 1, v{vM}')
        g(f'v_add_u32 v{vAd}, s{sTB}, v{vAd}')
        g(f'ds_read_u16 v{p}, v{vAd} offset:{2*384}')
        g(f'ds_read_u16 v{p+1}, v{vAd} offset:{2*385}')
    g(f'v_and_b32 v{vM}, 1, v{vLane}')
    g(f'v_cmp_eq_u32 vcc, 1, v{vM}')
    g('s_waitcnt lgkmcnt(0)')
    for it in range(2):
        D = fr + 12*it; p = fr + 24 + 2*it
        g(f'v_lshl_or_b32 v{p}, v{p+1}, 16, v{p}')
        perm(D, p, p, HI)
        perm(D+2, p, p, LO); g(f'v_mov_b32 v{D+3}, v{D+2}')
        g(f'v_cndmask_b32 v{p+1}, v{D}, v{D+2}, vcc')
        perm(D+1, p+1, D, 0x05040100)
        g(f'v_mov_b32 v{D+4}, v{D}')
        perm(D+5, D+2, p+1, 0x05040100)
        g(f'v_mov_b32 v{D+6}, v{D+2}'); g(f'v_mov_b32 v{D+7}, v{D+2}')
        st(D, it)
    g(f's_branch {LXE}')
    g.label(LX1)
    D = fr; p = fr + 8
    g(f'v_sub_u32 v{vM}, 127, v{vLane}')
    g(f'v_lshlrev_b32 v{vAd}, 2, v{vM}')
    g(f'v_add_u32 v{vAd}, s{sTB}, v{vAd}')
    g(f'ds_read_u16 v{p}, v{vAd} offset:{2*256}')
    g(f'ds_read_u16 v{p+2}, v{vAd} offset:{2*257}')
    g(f'ds_read_u16 v{p+1}, v{vAd} offset:{2*258}')
    g(f'v_sub_u32 v{vM}, 63, v{vLane}')
    g(f'v_cmp_gt_u32 vcc, 32, v{vLane}')
    oseg1 = [0, 0, 1, 2, 2, 2, 3, 4]
    g(f'v_lshlrev_b32 v{t1}, 2, v{vM}'); g(f'v_add_u32 v{t1}, 128, v{t1}')
    g(f'v_lshlrev_b32 v{t0}, 3, v{vM}')
    vals = fr + 12; tmp = fr + 30
    for e in range(9):
        rho = 7 - e
        if e < 8: a1, a0 = oseg1[rho], rho
        else: a1, a0 = 0, -1
        g(f'v_add_u32 v{vAd}, {a1}, v{t1}')
        g(f'v_add_u32 v{tmp}, {a0}, v{t0}')
        g(f'v_cndmask_b32 v{vAd}, v{tmp}, v{vAd}, vcc')
        if e == 8:
            g(f'v_max_i32 v{vAd}, 0, v{vAd}')
            g(f'v_mov_b32 v{tmp}, 255')
            g(f'v_cmp_eq_u32 s[44:45], 31, v{vLane}')
            g(f'v_cndmask_b32 v{vAd}, v{vAd}, v{tmp}, s[44:45]')
        g(f'v_lshlrev_b32 v{vAd}, 1, v{vAd}')
        g(f'v_add_u32 v{vAd}, s{sTB}, v{vAd}')
        g(f'ds_read_u16 v{vals+e}, v{vAd}')
    g('s_waitcnt lgkmcnt(9)')
    g(f'v_lshl_or_b32 v{p}, v{p+2}, 16, v{p}')
    perm(D, p+1, p+1, LO); perm(D+1, p, p, HI); perm(D+2, p, p, 0x01000302); perm(D+3, p, p, LO)
    perm(D+4, p, p+1, 0x07060100)
    g(f'v_mov_b32 v{D+5}, v{D+1}'); g(f'v_mov_b32 v{D+6}, v{D+3}'); g(f'v_mov_b32 v{D+7}, v{D+3}')
    st(D, 2)
    g('s_waitcnt lgkmcnt(2)')
    D = fr + 21 - 1
    D = fr + 20
    for k in range(4): g(f'v_lshl_or_b32 v{D+k}, v{vals+2*k+1}, 16, v{vals+2*k}') if False else None
    E = fr + 24; O_ = fr + 20
    g(f'v_cmp_eq_u32 vcc, 63, v{vLane}')
    g(f'v_mov_b32 v{tmp}, 0')
    g(f'v_cndmask_b32 v{vals+8}, v{vals+8}, v{tmp}, vcc')
    for k in range(4): g(f'v_lshl_or_b32 v{E+k}, v{vals+2*k+1}, 16, v{vals+2*k}')
    g(f'v_alignbit_b32 v{tmp}, v{vals+8}, v{E+3}, 16')
    for k in range(3): g(f'v_alignbit_b32 v{vals+k}, v{E+k+1}, v{E+k}, 16')
    g(f'v_mov_b32 v{vals+3}, v{tmp}')
    g(f'ds_write_b128 v{vO}, v[{E}:{E+3}] offset:{1024*3}')
    g(f'ds_write_b128 v{vO}, v[{vals}:{vals+3}] offset:{KIMG_COPY + 1024*3}')
    for k in range(4): g(f'v_mov_b32 v{fr+8+k}, 0')
    set_exec(g, 0xf)
    g(f'ds_write_b128 v{vO}, v[{fr+8}:{fr+11}] offset:4096')
    g(f'ds_write_b128 v{vO}, v[{fr+8}:{fr+11}] offset:{KIMG_COPY + 4096}')
    g('s_mov_b64 exec, -1')
    g.label(LXE)

def gen_conv(g, done_label, opts={}):
    SWS, SD = 4, 8
    sWave, sCh, sRh, sT0, sT1, sT2, sLB, sTB = range(16, 24)
    srd(g, SWS, P_WS); srd(g, SD, A_DSK)
    V = Regs(1, 128)
    vLane = V.alloc(); vT = [V.alloc() for _ in range(4)]
    vF = V.alloc(8); vG = V.alloc(); vDm = V.alloc()
    acc = V.alloc(32, 4); F = V.alloc(32, 4); G = V.alloc(32, 4)
    g(f'''v_lshrrev_b32 v{vT[0]}, 6, v0
v_and_b32 v{vLane}, 63, v0
v_readfirstlane_b32 s{sWave}, v{vT[0]}
s_lshr_b32 s{sT0}, s{sWave}, 1
s_and_b32 s{sRh}, s{sWave}, 1
s_lshl_b32 s{sCh}, s2, 2
s_add_u32 s{sCh}, s{sCh}, s{sT0}
s_mul_i32 s{sLB}, s{sT0}, {CONV_CH}
v_lshlrev_b32 v{vDm}, 4, v{vLane}''')
    g('s_waitcnt lgkmcnt(0)')
    srd_fin(g, SWS, WS_USED); srd_fin(g, SD, D*2)
    TBL = 4 * CONV_CH
    LT = g.newlabel('conv_tab')
    g(f's_lshr_b32 s{sT2}, s{sWave}, 1')
    g(f's_mul_i32 s{sTB}, s{sT2}, {KTAB_STRIDE}')
    g(f's_add_u32 s{sTB}, s{sTB}, {TBL}')
    g(f's_cmp_eq_u32 s{sRh}, 1')
    g(f's_cbranch_scc1 {LT}')
    g(f's_mul_i32 s{sT0}, s{sCh}, {KTAB_STRIDE}')
    g(f's_add_u32 s{sT0}, s{sT0}, {KTAB_OFF}')
    g(f's_mov_b32 m0, s{sTB}')
    g('s_nop 0')
    g(f'buffer_load_dwordx4 v{vDm}, s[{SWS}:{SWS+3}], s{sT0} offen lds')
    set_exec(g, (1 << 20) - 1)
    g(f'buffer_load_dwordx4 v{vDm}, s[{SWS}:{SWS+3}], s{sT0} offen offset:1024 lds')
    g('s_mov_b64 exec, -1')
    g.label(LT)
    g(f's_lshl_b32 s{sT0}, s{sCh}, 12')
    g(f's_lshl_b32 s{sT1}, s{sRh}, 11')
    g(f's_add_u32 s{sT0}, s{sT0}, s{sT1}')
    g(f's_add_u32 s{sT0}, s{sT0}, {UT_OFF}')
    g(f's_add_u32 s{sT1}, s{sT1}, s{sLB}')
    g(f's_add_u32 s{sT1}, s{sT1}, {KIMG_STRIDE + 512}')
    for k in range(2):
        g(f's_add_u32 m0, s{sT1}, {1024*k}')
        g('s_nop 0')
        g(f'buffer_load_dwordx4 v{vDm}, s[{SWS}:{SWS+3}], s{sT0} offen lds')
        g(f's_add_u32 s{sT0}, s{sT0}, 1024')
    g(f's_lshl_b32 s{sT0}, s{sCh}, 1')
    g(f'v_mov_b32 v{vT[0]}, 0')
    g(f'buffer_load_ushort v{vT[3]}, v{vT[0]}, s[{SD}:{SD+3}], s{sT0} offen')
    for k in range(4): g(f'v_mov_b32 v{F+k}, 0')
    g(f'v_add_u32 v{vT[0]}, s{sLB}, v{vDm}')
    set_exec(g, (1 << 32) - 1)
    g(f'ds_write_b128 v{vT[0]}, v[{F}:{F+3}] offset:{KIMG_STRIDE}')
    g('s_mov_b64 exec, -1')
    g(f'''v_and_b32 v{vT[0]}, 15, v{vLane}
v_lshrrev_b32 v{vT[1]}, 4, v{vLane}
v_lshrrev_b32 v{vT[2]}, 1, v{vT[1]}
v_lshlrev_b32 v{vT[2]}, 4, v{vT[2]}
v_add_u32 v{vT[2]}, v{vT[2]}, v{vT[0]}
v_and_b32 v{vG}, 1, v{vT[1]}
v_lshlrev_b32 v{vG}, 3, v{vG}
v_sub_u32 v{vT[2]}, v{vG}, v{vT[2]}
v_add_u32 v{vT[2]}, 2047, v{vT[2]}
v_and_b32 v{vT[2]}, 0xfffffffe, v{vT[2]}
v_lshlrev_b32 v{vT[2]}, 1, v{vT[2]}
v_and_b32 v{vG}, 1, v{vT[0]}
v_xor_b32 v{vG}, 1, v{vG}
v_mul_u32_u24 v{vG}, {KIMG_COPY}, v{vG}
v_add_u32 v{vT[2]}, v{vT[2]}, v{vG}
s_lshl_b32 s{sT0}, s{sRh}, 8
s_sub_u32 s{sT0}, s{sLB}, s{sT0}
s_sub_u32 s{sT0}, s{sT0}, 192
v_add_u32 v{vF}, s{sT0}, v{vT[2]}''')
    for q in range(1, 8): g(f'v_subrev_u32 v{vF+q}, {512*q}, v{vF}')
    g(f'''v_lshrrev_b32 v{vT[2]}, 1, v{vT[1]}
v_sub_u32 v{vT[2]}, v{vT[0]}, v{vT[2]}
v_lshlrev_b32 v{vT[2]}, 5, v{vT[2]}
v_and_b32 v{vG}, 1, v{vT[1]}
v_lshl_add_u32 v{vT[2]}, v{vG}, 4, v{vT[2]}
s_lshl_b32 s{sT0}, s{sRh}, 8
s_sub_u32 s{sT0}, s{sLB}, s{sT0}
s_add_u32 s{sT0}, s{sT0}, {KIMG_STRIDE + 512 - 192}
v_add_u32 v{vG}, s{sT0}, v{vT[2]}''')
    g('s_waitcnt vmcnt(0) lgkmcnt(0)')
    g('s_barrier')
    gen_expand(g, sRh, sTB, sLB, sT0, vLane, vT, F)
    g('s_waitcnt lgkmcnt(0)')
    g('s_barrier')
    def rdF(q, rr):
        o = 16 * (3 - rr)
        return [f'ds_read2_b32 v[{F+4*q}:{F+4*q+1}], v{vF+q} offset0:{o} offset1:{o+1}', f'ds_read2_b32 v[{F+4*q+2}:{F+4*q+3}], v{vF+q} offset0:{o+2} offset1:{o+3}']
    def rdG(sp, rr):
        return [f'ds_read_b128 v[{G+4*sp}:{G+4*sp+3}], v{vG} offset:{512*sp - 64*rr + 192}']
    for q in range(8):
        for l in rdF(q, 0) + rdG(7-q, 0): g(l)
    for rr in range(4):
        g('s_waitcnt lgkmcnt(0)')
        for q in range(8):
            for t in range(7, q-1, -1):
                sp = t - q
                C = '0' if (rr == 0 and q == 0) else f'v[{acc+4*t}:{acc+4*t+3}]'
                g(f'v_mfma_f32_16x16x32_bf16 v[{acc+4*t}:{acc+4*t+3}], v[{F+4*q}:{F+4*q+3}], v[{G+4*sp}:{G+4*sp+3}], {C}')
            if rr < 3:
                for l in rdF(q, rr+1) + rdG(7-q, rr+1): g(l)
    g('s_barrier')
    g(f'v_add_u32 v{vT[0]}, s{sLB}, v{vDm}')
    L1 = g.newlabel('conv_h1'); LJ = g.newlabel('conv_j')
    g(f's_cmp_eq_u32 s{sRh}, 1')
    g(f's_cbranch_scc1 {L1}')
    for k in range(4): g(f'ds_write_b128 v{vT[0]}, v[{acc+16+4*k}:{acc+16+4*k+3}] offset:{4096 + 1024*k}')
    g(f's_branch {LJ}')
    g.label(L1)
    for k in range(4): g(f'ds_write_b128 v{vT[0]}, v[{acc+4*k}:{acc+4*k+3}] offset:{1024*k}')
    for r in range(16): g(f'v_mov_b32 v{acc+r}, v{acc+16+r}')
    g(f'v_add_u32 v{vT[0]}, 4096, v{vT[0]}')
    g.label(LJ)
    g('s_waitcnt lgkmcnt(0)')
    g('s_barrier')
    for k in range(4): g(f'ds_read_b128 v[{F+4*k}:{F+4*k+3}], v{vT[0]} offset:{1024*k}')
    g(f'''v_and_b32 v{vT[1]}, 15, v{vLane}
v_lshrrev_b32 v{vT[2]}, 4, v{vLane}
v_lshlrev_b32 v{vT[1]}, 5, v{vT[1]}
v_lshl_add_u32 v{vT[1]}, v{vT[2]}, 3, v{vT[1]}
s_lshl_b32 s{sT0}, s{sRh}, 11
v_add_u32 v{vT[1]}, s{sT0}, v{vT[1]}
s_add_u32 s{sT1}, s{sLB}, {KIMG_STRIDE + 512}
v_add_u32 v{vT[2]}, s{sT1}, v{vT[1]}''')
    for k in range(4): g(f'ds_read_b64 v[{G+2*k}:{G+2*k+1}], v{vT[2]} offset:{512*k}')
    g(f'v_lshlrev_b32 v{vT[3]}, 16, v{vT[3]}')
    g('s_waitcnt lgkmcnt(0)')
    for k in range(4):
        for r in range(4):
            a = acc + 4*k + r
            g(f'v_add_f32 v{a}, v{a}, v{F+4*k+r}')
            u = G + 8 + r
            if r % 2 == 0: g(f'v_lshlrev_b32 v{u}, 16, v{G+2*k+r//2}')
            else: g(f'v_and_b32 v{u}, 0xffff0000, v{G+2*k+r//2}')
            g(f'v_fmac_f32 v{a}, v{u}, v{vT[3]}')
        g(f'v_cvt_pk_bf16_f32 v{acc+4*k}, v{acc+4*k}, v{acc+4*k+1}')
        g(f'v_cvt_pk_bf16_f32 v{acc+4*k+1}, v{acc+4*k+2}, v{acc+4*k+3}')
    g(f's_lshl_b32 s{sT0}, s{sCh}, 12')
    g(f's_add_u32 s{sT0}, s{sT0}, {YT_OFF}')
    for k in range(4):
        g(f'buffer_store_dwordx2 v[{acc+4*k}:{acc+4*k+1}], v{vT[1]}, s[{SWS}:{SWS+3}], s{sT0} offen offset:{512*k}')
    g(f's_branch {done_label}')

def gen_backtr(g, done_label, opts={}):
    SWS, SO = 4, 8
    sWave, sP, sA, sB, sT0, sT1, sT2, sT3 = range(16, 24)
    srd(g, SWS, P_WS); srd(g, SO, P_OUT)
    vLane = 1; vT = [2, 3, 4, 5]
    g(f'''v_lshrrev_b32 v{vT[0]}, 6, v0
v_and_b32 v{vLane}, 63, v0
v_readfirstlane_b32 s{sWave}, v{vT[0]}
s_lshl_b32 s{sP}, s2, 3
s_add_u32 s{sP}, s{sP}, s{sWave}
s_and_b32 s{sA}, s{sP}, 15
s_lshr_b32 s{sB}, s{sP}, 4
s_mul_i32 s{sT0}, s{sB}, {32*4096}
s_lshl_b32 s{sT1}, s{sA}, 8
s_add_u32 s{sT0}, s{sT0}, s{sT1}
s_add_u32 s{sT0}, s{sT0}, {YT_OFF}
s_mul_i32 s{sT1}, s{sA}, {128*2304}
s_lshl_b32 s{sB}, s{sB}, 6
s_add_u32 s{sT1}, s{sT1}, s{sB}
v_lshrrev_b32 v{vT[2]}, 2, v{vLane}
v_and_b32 v{vT[3]}, 3, v{vLane}
v_lshlrev_b32 v{vT[0]}, 15, v{vT[3]}
v_lshl_add_u32 v{vT[0]}, v{vT[2]}, 4, v{vT[0]}
v_mul_u32_u24 v{vT[1]}, {8*2304}, v{vT[2]}
v_lshl_add_u32 v{vT[1]}, v{vT[3]}, 4, v{vT[1]}''')
    g('s_waitcnt lgkmcnt(0)')
    srd_fin(g, SWS, WS_USED); srd_fin(g, SO, L*2*D*2)
    A, B = 8, 40
    for c in range(8):
        g(f'buffer_load_dwordx4 v[{A+4*c}:{A+4*c+3}], v{vT[0]}, s[{SWS}:{SWS+3}], s{sT0} offen')
        if c < 7: g(f's_add_u32 s{sT0}, s{sT0}, 4096')
    g('s_waitcnt vmcnt(0)')
    emit_8x8(g, A, B, sT2, sT3)
    for e in range(8):
        g(f'buffer_store_dwordx4 v[{B+4*e}:{B+4*e+3}], v{vT[1]}, s[{SO}:{SO+3}], s{sT1} offen')
        if e < 7: g(f's_add_u32 s{sT1}, s{sT1}, 2304')
    g(f's_branch {done_label}')
```

```python
L = 2048; D = 576; H = 32; DH = 18; NM = 128
REC_K = 1152
REC_V = 1216
REC = REC_K + REC_V
KV_HSTRIDE = 64 * REC
KV_OFF = 0
Q_OFF = 5 * 1024 * 1024
Q_HSTRIDE = 64 * REC_K
OM_OFF = 8 * 1024 * 1024
KIMG_OFF = 11 * 1024 * 1024
KIMG_COPY = 4160
KIMG_STRIDE = 2 * KIMG_COPY
KTAB_OFF = 11 * 1024 * 1024
KTAB_STRIDE = 1344
UT_OFF = 16 * 1024 * 1024
YT_OFF = 19 * 1024 * 1024
WOT_OFF = 22 * 1024 * 1024
WS_USED = 23 * 1024 * 1024
A_U, A_LAR, A_AIM, A_CR, A_CI, A_LDT, A_DSK, B_X, B_WQKV, B_WO, P_OUT, P_DBG, P_WS = [8*i for i in range(13)]
QSCALE = (18 ** -0.5) * 1.4426950408889634

def KA(off): return 34 if off == P_WS else 36 + off // 4
def load_kernargs(g, which=None):
    if which is None:
        g('s_load_dwordx16 s[36:51], s[0:1], 0')
        g('s_load_dwordx8 s[52:59], s[0:1], 64')
        g('s_load_dwordx2 s[34:35], s[0:1], 96')
    else:
        for ka in which: g(f's_load_dwordx2 s[{KA(ka)}:{KA(ka)+1}], s[0:1], {ka}')
def srd_from(g, s, ka, size):
    g(f's_mov_b32 s{s}, s{KA(ka)}')
    g(f's_mov_b32 s{s+1}, s{KA(ka)+1}')
    g(f's_mov_b32 s{s+2}, {size}')
    g(f's_mov_b32 s{s+3}, 0x20000')
```

```python
import sys
from asmlib import *
from layout import *
import k_gemm1, k_attn, k_ssm, k_gemm3

HEADER = open('concat_heads__ssm_conv_s4d__mha_block__prompt.s.ref').read().split('; Override launch')[0]

def kernel_text(name, g, vgpr, sgpr=102):
    lines, n = fix_hazards(g.lines)
    lines = align8(lines)
    out = [f'.globl {name}', '.p2align 8', f'.type {name},@function', f'{name}:']
    for l in lines:
        out.append(l if (l.endswith(':') or l.startswith(';') or l.startswith('.')) else '    ' + l)
    txt = '\n'.join(out) + '\n'
    kd = f'''.section .rodata,"a"
.p2align 6
.amdhsa_kernel {name}
  .amdhsa_next_free_vgpr {vgpr}
  .amdhsa_next_free_sgpr {sgpr}
  .amdhsa_accum_offset {(vgpr+3)//4*4}
  .amdhsa_group_segment_fixed_size 0
  .amdhsa_kernarg_size 104
  .amdhsa_user_sgpr_count 2
  .amdhsa_user_sgpr_kernarg_segment_ptr 1
  .amdhsa_system_sgpr_workgroup_id_x 1
.end_amdhsa_kernel
.text
'''
    return txt, kd, n

PROF_OFF = 200 * 1024 * 1024
def prof_begin(g, opts):
    if opts.get('prof'):
        g('s_mov_b32 s100, s2')
        g('s_memrealtime s[96:97]')
        g('s_memtime s[98:99]')
def prof_end(g, opts, launch_idx):
    if not opts.get('prof'): return
    g('s_waitcnt vmcnt(0) lgkmcnt(0)')
    g('s_memrealtime s[92:93]')
    g('s_memtime s[94:95]')
    g(f's_load_dwordx2 s[90:91], s[0:1], {P_WS}')
    g('s_waitcnt lgkmcnt(0)')
    g(f's_add_u32 s90, s90, {PROF_OFF + launch_idx*(1<<20)}')
    g('s_addc_u32 s91, s91, 0')
    g('s_sub_u32 s94, s94, s98')
    g('v_lshrrev_b32 v1, 6, v0')
    g('s_lshl_b32 s88, s100, 4')
    g('v_add_u32 v1, s88, v1')
    g('v_lshlrev_b32 v1, 4, v1')
    g('v_mov_b32 v4, s96')
    g('v_mov_b32 v5, s92')
    g('v_mov_b32 v6, s94')
    g('v_mov_b32 v7, 1')
    if ((opts.get('stamps') or opts.get('stampsk')) and launch_idx == 0) or (opts.get('stamps2') and launch_idx == 1):
        g('s_sub_u32 s60, s60, s98'); g('s_sub_u32 s62, s62, s98'); g('s_sub_u32 s64, s64, s98')
        g('v_mov_b32 v4, s60'); g('v_mov_b32 v5, s62'); g('v_mov_b32 v6, s64'); g('v_mov_b32 v7, s94')
    g('v_and_b32 v2, 63, v0')
    g('v_cmp_eq_u32 vcc, 0, v2')
    g('s_and_saveexec_b64 s[88:89], vcc')
    L = g.newlabel('prof')
    g(f's_cbranch_execz {L}')
    g('global_store_dwordx4 v1, v[4:7], s[90:91]')
    if opts.get('st'):
        g('v_lshlrev_b32 v1, 1, v1')
        g('v_add_u32 v1, 0x80000, v1')
        for q in range(2):
            for k in range(4):
                g(f's_sub_u32 s{60+2*(4*q+k)}, s{60+2*(4*q+k)}, s98')
                g(f'v_mov_b32 v{4+k}, s{60+2*(4*q+k)}')
            g(f'global_store_dwordx4 v1, v[4:7], s[90:91] offset:{16*q}')
    g.label(L)
    g('s_waitcnt vmcnt(0)')

def make_launch(name, idx, roles, opts, uid0):
    g = Gen(); g.uid = uid0
    total = sum(c for c, _ in roles)
    g(f's_cmp_ge_u32 s2, {total}')
    g(f's_cbranch_scc1 {name}_exit')
    prof_begin(g, opts)
    base = 0; labels = []
    for i, (c, fn) in enumerate(roles):
        labels.append(f'{name}_role{i}')
    base = 0
    for i, (c, fn) in enumerate(roles):
        base += c
        if i < len(roles) - 1:
            g(f's_cmp_lt_u32 s2, {base}')
            g(f's_cbranch_scc1 {labels[i]}')
    order = [len(roles) - 1] + list(range(len(roles) - 1))
    for i in order:
        c, fn = roles[i]
        b = sum(cc for cc, _ in roles[:i])
        g.label(labels[i])
        if b: g(f's_sub_u32 s2, s2, {b}')
        fn(g, f'{name}_done', opts)
    g.label(f'{name}_done')
    prof_end(g, opts, idx)
    g.label(f'{name}_exit')
    g('s_endpgm')
    return g, total

def build(opts):
    launches = []; texts = []; kds = []
    specs = [
        ('k1_kernel', [(192, k_gemm1.gen_qkv_gemm)] + ([] if opts.get('noaux') else [(64, k_ssm.gen_l1_aux)]), max(k_gemm1.LDS_BYTES, k_ssm.AUX_LDS), 256),
        ('k2_kernel', [(256, k_attn.gen_attn)] + ([] if opts.get('noconv') else [(144, k_ssm.gen_conv)]), max(k_attn.LDS_BYTES, k_ssm.CONV_LDS), 128),
        ('k3_kernel', [(192, k_gemm3.gen_outproj), (36, k_ssm.gen_backtr)], k_gemm3.LDS_BYTES, 128),
    ]
    for idx, (name, roles, lds, vg) in enumerate(specs):
        g, total = make_launch(name[:2], idx, roles, opts, 10000*idx)
        t, kd, n = kernel_text(name, g, vg)
        print(name, 'nops inserted', n, 'lines', len(g.lines), file=sys.stderr)
        launches.append((name, total, 512, lds)); texts.append(t); kds.append(kd)
    hdr = HEADER
    for (k, grid, blk, lds) in launches:
        hdr += f'; @launch kernel={k} grid=({grid},1,1) block=({blk},1,1) lds={lds}\n'
    src = hdr + '.amdgcn_target "amdgcn-amd-amdhsa--gfx950"\n.text\n'
    for t, kd in zip(texts, kds):
        src += t + kd
    return src

if __name__ == '__main__':
    out = sys.argv[1] if len(sys.argv) > 1 else 'out.s'
    opts = {}
    for a in sys.argv[2:]:
        if '=' in a: k, v = a.split('='); opts[k] = v
        else: opts[a] = True
    open(out, 'w').write(build(opts))
```

```python
from asmlib import *
from layout import *
import struct
import k_kgen

def f32bits(x): return struct.unpack('<I', struct.pack('<f', x))[0]

STAGE = 17408
import os
NSLOT = int(os.environ.get('NSLOT', 6))
NKS = 18
RSQ = 296
RSV = 264
STG = {4: None, 5: 3 * 17408 - 0, 6: 0, 7: 4 * 17408}[NSLOT] if NSLOT != 5 else None
KG_BASE = NSLOT * STAGE
LDS_BYTES = KG_BASE + 4 * k_kgen.TASK_LDS + 2 * k_kgen.TAB_LDS

def srd(g, s, kernarg_off):
    g(f's_load_dwordx2 s[{s}:{s+1}], s[0:1], {kernarg_off}')
def srd_fin(g, s, size):
    g(f's_mov_b32 s{s+2}, {size}')
    g(f's_mov_b32 s{s+3}, 0x20000')

def set_exec(g, mask):
    if mask == (1 << 64) - 1:
        g('s_mov_b64 exec, -1')
    elif mask < (1 << 31):
        g(f's_mov_b64 exec, {mask:#x}')
    else:
        lo = mask & 0xffffffff; hi = mask >> 32
        g('s_mov_b32 exec_lo, -1' if lo == 0xffffffff else f's_mov_b32 exec_lo, {lo:#x}')
        g('s_mov_b32 exec_hi, -1' if hi == 0xffffffff else f's_mov_b32 exec_hi, {hi:#x}')

def gen_qkv_gemm(g, done_label, opts={}):
    SX, SW, SO = 4, 8, 12
    sWave, sTw, sLw, sMt, sNt, sSec = 16, 17, 18, 19, 20, 21
    sKx, sKw, sKc, sMX, sMW, sT0, sT1, sT2, sScale, sGS, sOutBase, sKx2 = 22, 23, 24, 25, 26, 27, 28, 29, 30, 31, 32, 33
    V = Regs(1, 128)
    vLane = V.alloc(); vG = V.alloc(); vI = V.alloc()
    vXg = V.alloc(); vWg = V.alloc(3); V.alloc(2)
    vXr = V.alloc(3); vWr = V.alloc(3)
    vEw = V.alloc()
    V.alloc()
    vT = [V.alloc() for i in range(8)]
    VC = Regs(V.next, 256)
    acc = VC.alloc(72, 4)
    fr = [VC.alloc(44, 4), VC.alloc(44, 4)]
    kg = k_kgen.KGen(V.next, 256, 76, vLane)
    CP = 200
    assert sScale % 2 == 0 and vT[6] % 2 == 0
    usekg = not opts.get('nokg')
    LCOMP = g.newlabel('g1_comp'); LKG = g.newlabel('g1_kg'); LQE = g.newlabel('qk_epi'); LVE = g.newlabel('v_epi')
    g(f'v_lshrrev_b32 v{vT[0]}, 6, v0')
    g(f'v_and_b32 v{vLane}, 63, v0')
    g(f'v_readfirstlane_b32 s{sWave}, v{vT[0]}')
    g(f's_cmp_lt_u32 s{sWave}, 4')
    g(f's_cbranch_scc1 {LCOMP}')
    load_kernargs(g, [B_X, B_WQKV, P_WS])
    def tile_map():
        g(f'''s_and_b32 s{sT0}, s2, 7
s_lshr_b32 s{sT1}, s2, 3
s_and_b32 s{sMt}, s{sT0}, 3
s_lshl_b32 s{sMt}, s{sMt}, 2
s_and_b32 s{sT2}, s{sT1}, 3
s_add_u32 s{sMt}, s{sMt}, s{sT2}
s_lshr_b32 s{sNt}, s{sT0}, 2
s_mul_i32 s{sNt}, s{sNt}, 6
s_lshr_b32 s{sT2}, s{sT1}, 2
s_add_u32 s{sNt}, s{sNt}, s{sT2}
s_lshr_b32 s{sSec}, s{sNt}, 2''')
    tile_map()
    ra, rb, rc = [int(x) for x in opts.get('rot', '5,20,7').split(',')]
    g(f'''s_and_b32 s{sT2}, s{sT1}, 3
s_mul_i32 s{sKc}, s{sT2}, {ra}
s_lshr_b32 s{sT2}, s{sT1}, 2
s_mul_i32 s{sT2}, s{sT2}, {rb}
s_add_u32 s{sKc}, s{sKc}, s{sT2}
s_mul_i32 s{sT2}, s{sT0}, {rc}
s_add_u32 s{sKc}, s{sKc}, s{sT2}
s_mul_i32 s{sT2}, s{sKc}, 3641
s_lshr_b32 s{sT2}, s{sT2}, 16
s_mul_i32 s{sT2}, s{sT2}, 18
s_sub_u32 s{sKc}, s{sKc}, s{sT2}
s_lshl_b32 s{sKx}, s{sKc}, 6
s_mul_i32 s{sKw}, s{sKc}, {32*3456}
s_sub_u32 s{sLw}, s{sWave}, 4''')
    g(f'''v_lshrrev_b32 v{vT[0]}, 2, v{vLane}
v_and_b32 v{vT[1]}, 3, v{vLane}
v_lshrrev_b32 v{vT[2]}, 2, v{vT[0]}
v_and_b32 v{vT[2]}, 2, v{vT[2]}
v_xor_b32 v{vT[1]}, v{vT[1]}, v{vT[2]}
s_lshl_b32 s{sT0}, s{sMt}, 7
s_lshl_b32 s{sT1}, s{sLw}, 5
s_add_u32 s{sT0}, s{sT0}, s{sT1}
v_add_u32 v{vT[0]}, s{sT0}, v{vT[0]}
v_mul_u32_u24 v{vT[0]}, 1152, v{vT[0]}
v_lshl_add_u32 v{vXg}, v{vT[1]}, 4, v{vT[0]}''')
    g(f's_mul_i32 s{sT1}, s{sNt}, 288')
    g(f's_lshl_b32 s{sT0}, s{sLw}, 7')
    for jj in range(3):
        if jj < 2: g(f'v_add_u32 v{vT[0]}, s{sT0}, v{vLane}'); g(f's_add_u32 s{sT0}, s{sT0}, 64')
        else: g(f'v_add_u32 v{vT[0]}, 512, v{vLane}')
        g(f'''v_mul_u32_u24 v{vT[1]}, 3641, v{vT[0]}
v_lshrrev_b32 v{vT[1]}, 16, v{vT[1]}
v_mul_u32_u24 v{vT[2]}, 18, v{vT[1]}
v_sub_u32 v{vT[2]}, v{vT[0]}, v{vT[2]}
v_and_b32 v{vT[3]}, 19, v{vT[1]}
v_bfe_u32 v{vT[4]}, v{vT[1]}, 2, 1
v_lshl_add_u32 v{vT[3]}, v{vT[4]}, 3, v{vT[3]}
v_bfe_u32 v{vT[4]}, v{vT[1]}, 3, 1
v_lshl_add_u32 v{vT[3]}, v{vT[4]}, 2, v{vT[3]}
v_mul_u32_u24 v{vT[3]}, 3456, v{vT[3]}
v_lshl_add_u32 v{vT[3]}, v{vT[2]}, 4, v{vT[3]}
v_add_u32 v{vWg+jj}, s{sT1}, v{vT[3]}''')
    g(f's_lshl_b32 s{sMX}, s{sLw}, 11')
    g(f's_add_u32 s{sMW}, s{sMX}, 8192')
    g('s_waitcnt lgkmcnt(0)')
    srd_from(g, SX, B_X, L*D*2); srd_from(g, SW, B_WQKV, D*3*D*2); srd_from(g, SO, P_WS, WS_USED)
    stamp(g, opts, 'g1', 0)
    NL = 4
    def dma_stage(s):
        sb = (s % NSLOT) * STAGE
        for j in range(2):
            g(f's_add_u32 m0, s{sMX}, {sb + 1024*j}')
            g(f's_add_u32 s{sKx2}, s{sKx}, {16*1152*j}')
            g(f'buffer_load_dwordx4 v{vXg}, s[{SX}:{SX+3}], s{sKx2} offen lds')
            g(f's_add_u32 m0, s{sMW}, {sb + 1024*j}')
            if j == 0: g(f's_add_u32 s{sKc}, s{sKc}, 1')
            else: g(f's_cmp_eq_u32 s{sLw}, {s % 4}')
            g(f'buffer_load_dwordx4 v{vWg+j}, s[{SW}:{SW+3}], s{sKw} offen lds')
        Ls = g.newlabel('nox')
        g(f's_mov_b32 m0, {sb + 8192 + 8192}')
        g(f's_cbranch_scc0 {Ls}')
        g(f'buffer_load_dwordx4 v{vWg+2}, s[{SW}:{SW+3}], s{sKw} offen lds')
        g.label(Ls)
        g(f's_add_u32 s{sKx}, s{sKx}, 64')
        g(f's_add_u32 s{sKw}, s{sKw}, {32*3456}')
        g(f's_cmp_eq_u32 s{sKc}, {NKS}')
        g(f's_cselect_b32 s{sKc}, 0, s{sKc}')
        g(f's_cselect_b32 s{sKx}, 0, s{sKx}')
        g(f's_cselect_b32 s{sKw}, 0, s{sKw}')
    g('s_barrier')
    NPRO = int(opts.get('npro', 5))
    for s in range(NPRO): dma_stage(s)
    issued = NPRO
    stamp(g, opts, 'g1', 1)
    g(f's_waitcnt vmcnt({NL*(issued-1)})')
    g('s_barrier')
    stamp(g, opts, 'g1', 3)
    depth = int(opts.get('depth', NSLOT))
    n = 0
    while issued < min(NKS, depth) and n < 2:
        dma_stage(issued); issued += 1; n += 1
    def kg_setup():
        g(f'''s_lshr_b32 s{sT0}, s{sLw}, 1
s_lshl_b32 s{kg.sCh}, s2, 1
s_add_u32 s{kg.sCh}, s{kg.sCh}, s{sT0}
s_and_b32 s{kg.sHf}, s{sLw}, 1
s_mul_i32 s{kg.sLB}, s{sT0}, {2*k_kgen.TASK_LDS}
s_add_u32 s{kg.sLB}, s{kg.sLB}, {KG_BASE}
s_mul_i32 s{kg.sTB}, s{sT0}, {k_kgen.TAB_LDS}
s_add_u32 s{kg.sTB}, s{kg.sTB}, {KG_BASE + 4*k_kgen.TASK_LDS}''')
    for s in range(NKS - 1):
        g(f's_waitcnt vmcnt({NL*max(issued - 1 - (s+1), 0)})')
        g('s_barrier')
        n = 0
        while issued < NKS and issued <= s + depth and n < 2:
            dma_stage(issued); issued += 1; n += 1
        if s == 5: stamp(g, opts, 'g1', 4)
        if usekg and s == 10: kg_setup()
        if usekg and 11 <= s <= 14:
            Lf = g.newlabel('g1_fin')
            g(f's_cmp_eq_u32 s{kg.sHf}, 1')
            g(f's_cbranch_scc1 {Lf}')
            if s == 13: g('s_waitcnt lgkmcnt(0)')
            for l in kg.finish_chunks()[s - 11]: g(l)
            if s == 14: g('s_waitcnt lgkmcnt(0)')
            g.label(Lf)
        if usekg and s == 16: kg.tail3(g, SO)
    stamp(g, opts, 'g1', 5)
    g(f's_cmp_eq_u32 s{sSec}, 2')
    g(f's_cbranch_scc1 {LVE}')
    g(f's_branch {LQE}')

    g.label(LCOMP)
    g(f's_mov_b32 s{sTw}, s{sWave}')
    if usekg:
        load_kernargs(g, [A_LAR, A_AIM, A_CR, A_CI, A_LDT])
        g(f'''s_lshr_b32 s{sT0}, s{sTw}, 1
s_lshl_b32 s{kg.sCh}, s2, 1
s_add_u32 s{kg.sCh}, s{kg.sCh}, s{sT0}
s_and_b32 s{kg.sHf}, s{sTw}, 1
s_mul_i32 s{kg.sLB}, s{sTw}, {k_kgen.TASK_LDS}
s_add_u32 s{kg.sLB}, s{kg.sLB}, {KG_BASE}''')
        g('s_waitcnt lgkmcnt(0)')
        kg.loads(g)
    load_kernargs(g, [P_WS])
    tile_map()
    g('s_barrier')
    if usekg:
        g('s_waitcnt vmcnt(0)')
        stamp(g, opts, 'g1', 2)
        for l in kg.body(): g('s_waitcnt lgkmcnt(0)' if l == 'NEXT' else l)
        kg.publish(g)
    g(f'v_lshrrev_b32 v{vG}, 4, v{vLane}')
    g(f'v_and_b32 v{vI}, 15, v{vLane}')
    g(f'''v_lshrrev_b32 v{vT[0]}, 2, v{vI}
v_and_b32 v{vT[0]}, 2, v{vT[0]}
v_xor_b32 v{vT[0]}, v{vT[0]}, v{vG}
v_lshlrev_b32 v{vT[0]}, 4, v{vT[0]}
s_lshl_b32 s{sT0}, s{sTw}, 5
v_add_u32 v{vT[1]}, s{sT0}, v{vI}
v_lshl_add_u32 v{vXr}, v{vT[1]}, 6, v{vT[0]}''')
    g(f'''v_lshrrev_b32 v{vT[0]}, 1, v{vG}
v_lshlrev_b32 v{vT[0]}, 4, v{vT[0]}
v_and_b32 v{vT[1]}, 1, v{vG}
v_lshl_add_u32 v{vT[0]}, v{vT[1]}, 2, v{vT[0]}
v_lshrrev_b32 v{vT[1]}, 2, v{vI}
v_add_u32 v{vT[0]}, v{vT[0]}, v{vT[1]}
v_mul_u32_u24 v{vT[0]}, 288, v{vT[0]}
v_and_b32 v{vT[1]}, 3, v{vI}
v_lshl_add_u32 v{vWr}, v{vT[1]}, 3, v{vT[0]}
v_add_u32 v{vXr+1}, {3*STAGE}, v{vXr}
v_add_u32 v{vWr+1}, {3*STAGE}, v{vWr}
v_add_u32 v{vXr+2}, {6*STAGE}, v{vXr}
v_add_u32 v{vWr+2}, {6*STAGE}, v{vWr}''')
    g('s_waitcnt lgkmcnt(0)')
    srd_from(g, SO, P_WS, WS_USED)
    LV = g.newlabel('qkv_v')
    NCT = 9
    def mainloop(isV):
        def reads(s, fs):
            sl = s % NSLOT
            bank = sl // 3
            sb = (sl % 3) * STAGE
            ax = vXr + bank; aw = vWr + bank
            out = []
            for m in range(2):
                out.append(f'ds_read_b128 v[{fs+4*m}:{fs+4*m+3}], v{ax} offset:{sb + m*1024}')
            for c in range(NCT):
                for h in range(2):
                    r = fs + 8 + 4*c + 2*h
                    out.append(f'ds_read_b64_tr_b16 v[{r}:{r+1}], v{aw} offset:{sb + 8192 + h*2304 + c*32}')
            return out
        def mfmas(s, fs):
            out = []
            for c in range(NCT):
                for m in range(2):
                    a = acc + (c*2+m)*4
                    xf = f'v[{fs+4*m}:{fs+4*m+3}]'; wf = f'v[{fs+8+4*c}:{fs+8+4*c+3}]'
                    A, B = (xf, wf) if isV else (wf, xf)
                    C = '0' if s == 0 else f'v[{a}:{a+3}]'
                    out.append(f'v_mfma_f32_16x16x32_bf16 v[{a}:{a+3}], {A}, {B}, {C}')
            return out
        def stage_out(t, scale):
            c, m = t // 2, t % 2
            a = acc + t*4
            out = []
            if scale:
                out.append(f'v_pk_mul_f32 v[{a}:{a+1}], v[{a}:{a+1}], s[{sScale}:{sScale+1}] op_sel_hi:[1,0]')
                out.append(f'v_pk_mul_f32 v[{a+2}:{a+3}], v[{a+2}:{a+3}], s[{sScale}:{sScale+1}] op_sel_hi:[1,0]')
            out.append(f'v_cvt_pk_bf16_f32 v{a}, v{a}, v{a+1}')
            out.append(f'v_cvt_pk_bf16_f32 v{a+1}, v{a+2}, v{a+3}')
            off = (c*16*RSV + m*32) if isV else (c*32 + m*16*RSQ)
            out.append(f'ds_write_b64 v{vEw}, v[{a}:{a+1}] offset:{off}')
            return out
        g('s_barrier')
        for l in reads(0, fr[0]): g(l)
        for s in range(NKS - 1):
            g('s_waitcnt lgkmcnt(0)')
            g('s_barrier')
            rd = reads(s+1, fr[(s+1) % 2])
            mf = mfmas(s, fr[s % 2])
            k = 0
            for i, m_ in enumerate(mf):
                g(m_)
                nrd = 2 if i < 2 else 1
                for _ in range(nrd):
                    if k < len(rd): g(rd[k]); k += 1
            while k < len(rd): g(rd[k]); k += 1
        g('s_waitcnt lgkmcnt(0)')
        mf = mfmas(NKS-1, fr[(NKS-1) % 2])
        LAG = 4
        def last(scale):
            for i in range(len(mf) + LAG):
                if i < len(mf): g(mf[i])
                if i >= LAG:
                    for l in stage_out(i - LAG, scale): g(l)
        if isV:
            last(False)
        else:
            Lq = g.newlabel('g1_q'); Lz = g.newlabel('g1_z')
            g(f's_cmp_eq_u32 s{sSec}, 0')
            g(f's_cbranch_scc1 {Lq}')
            last(False)
            g(f's_branch {Lz}')
            g.label(Lq)
            g(f's_mov_b32 s{sScale}, {f32bits(QSCALE):#x}')
            last(True)
            g.label(Lz)
    g(f's_cmp_eq_u32 s{sSec}, 2')
    g(f's_cbranch_scc1 {LV}')
    g(f'''s_lshl_b32 s{sT0}, s{sTw}, 5
v_add_u32 v{vT[0]}, s{sT0}, v{vI}
v_mul_u32_u24 v{vT[0]}, {RSQ}, v{vT[0]}
v_lshl_add_u32 v{vEw}, v{vG}, 3, v{vT[0]}
v_add_u32 v{vEw}, {STG}, v{vEw}''')
    mainloop(False)
    g(f's_branch {LQE}')
    g.label(LV)
    g(f'''v_mul_u32_u24 v{vT[0]}, {RSV}, v{vI}
v_lshl_add_u32 v{vT[0]}, v{vG}, 3, v{vT[0]}
s_lshl_b32 s{sT0}, s{sTw}, 6
s_add_u32 s{sT0}, s{sT0}, {STG}
v_add_u32 v{vEw}, s{sT0}, v{vT[0]}''')
    mainloop(True)
    g(f's_branch {LVE}')

    def outbase():
        g(f'''s_cmp_eq_u32 s{sSec}, 0
s_mov_b32 s{sGS}, {REC}
s_cselect_b32 s{sGS}, {REC_K}, s{sGS}
s_and_b32 s{sT0}, s{sNt}, 3
s_lshl_b32 s{sT0}, s{sT0}, 3
s_add_u32 s{sT0}, s{sT0}, s{sWave}
s_lshl_b32 s{sT0}, s{sT0}, 6
s_lshl_b32 s{sT1}, s{sMt}, 2
s_add_u32 s{sT0}, s{sT0}, s{sT1}
s_mul_i32 s{sOutBase}, s{sT0}, s{sGS}
s_cmp_eq_u32 s{sSec}, 0
s_cselect_b32 s{sT1}, {Q_OFF}, {KV_OFF}
s_add_u32 s{sOutBase}, s{sOutBase}, s{sT1}
s_cmp_eq_u32 s{sSec}, 2
s_cselect_b32 s{sT1}, {REC_K}, 0
s_add_u32 s{sOutBase}, s{sOutBase}, s{sT1}''')
    def kg_end():
        return

    g.label(LQE)
    outbase()
    vA, vB, vC, vD = vT[0], vT[1], vT[2], vT[3]
    g(f'''v_and_b32 v{vA}, 31, v{vLane}
v_mul_u32_u24 v{vA}, {RSQ}, v{vA}
v_lshrrev_b32 v{vB}, 5, v{vLane}
v_lshl_add_u32 v{vA}, v{vB}, 4, v{vA}
s_mul_i32 s{sT0}, s{sWave}, 36
s_add_u32 s{sT0}, s{sT0}, {STG}
v_add_u32 v{vA}, s{sT0}, v{vA}
v_lshlrev_b32 v{vB}, 4, v{vLane}''')
    g(f'''v_lshrrev_b32 v{vC}, 3, v{vLane}
v_and_b32 v{vD}, 7, v{vLane}
v_mul_lo_u32 v{vT[4]}, v{vC}, s{sGS}
v_lshl_add_u32 v{vT[4]}, v{vD}, 4, v{vT[4]}
v_add_u32 v{vT[4]}, 1024, v{vT[4]}
v_lshlrev_b32 v{vC}, 5, v{vC}
v_lshl_add_u32 v{vC}, v{vD}, 2, v{vC}
v_mul_u32_u24 v{vC}, {RSQ}, v{vC}
s_add_u32 s{sT0}, s{sT0}, 32
v_add_u32 v{vC}, s{sT0}, v{vC}''')
    g('s_waitcnt lgkmcnt(0)')
    g('s_barrier')
    stamp(g, opts, 'g1', 6)
    d0 = CP
    for tau in range(4):
        d = d0 + 4*tau
        g(f'ds_read2_b32 v[{d}:{d+1}], v{vA} offset0:0 offset1:1')
        g(f'ds_read2_b32 v[{d+2}:{d+3}], v{vA} offset0:2 offset1:3')
        if tau < 3: g(f'v_add_u32 v{vA}, {32*RSQ}, v{vA}')
    d = d0 + 16
    set_exec(g, (1 << 32) - 1)
    g(f'ds_read2_b32 v[{d}:{d+1}], v{vC} offset0:0 offset1:{RSQ//4}')
    g(f'ds_read2_b32 v[{d+2}:{d+3}], v{vC} offset0:{2*RSQ//4} offset1:{3*RSQ//4}')
    g('s_mov_b64 exec, -1')
    for tau in range(4):
        d = d0 + 4*tau
        g(f's_waitcnt lgkmcnt({2*(3-tau)+2})')
        g(f'buffer_store_dwordx4 v[{d}:{d+3}], v{vB}, s[{SO}:{SO+3}], s{sOutBase} offen')
        if tau < 3:
            g(f's_add_u32 s{sOutBase}, s{sOutBase}, s{sGS}')
    g(f's_mul_i32 s{sT0}, s{sGS}, 3')
    g(f's_sub_u32 s{sOutBase}, s{sOutBase}, s{sT0}')
    g('s_waitcnt lgkmcnt(0)')
    set_exec(g, (1 << 32) - 1)
    d = d0 + 16
    g(f'buffer_store_dwordx4 v[{d}:{d+3}], v{vT[4]}, s[{SO}:{SO+3}], s{sOutBase} offen')
    g('s_mov_b64 exec, -1')
    kg_end()
    stamp(g, opts, 'g1', 7)
    g(f's_branch {done_label}')

    g.label(LVE)
    outbase()
    g(f'''v_mov_b32 v{vT[6]}, 0x3f803f80
v_mov_b32 v{vT[7]}, 0x3f803f80
v_lshlrev_b32 v{vT[0]}, 3, v{vLane}
v_add_u32 v{vT[0]}, {STG + 144*RSV}, v{vT[0]}''')
    set_exec(g, (1 << 32) - 1)
    g(f'ds_write_b64 v{vT[0]}, v[{vT[6]}:{vT[7]}]')
    g('s_mov_b64 exec, -1')
    vA, vA2, vB, vB2 = vT[0], vT[1], vT[2], vT[3]
    g(f's_mul_i32 s{sT0}, s{sWave}, 18')
    for (dst, add) in ((vA, 0), (vA2, 64)):
        g(f'''v_add_u32 v{vT[4]}, {add}, v{vLane}
v_mul_u32_u24 v{vT[5]}, 3450, v{vT[4]}
v_lshrrev_b32 v{vT[5]}, 16, v{vT[5]}
v_mul_u32_u24 v{vT[6]}, 19, v{vT[5]}
v_sub_u32 v{vT[6]}, v{vT[4]}, v{vT[6]}
v_add_u32 v{vT[4]}, s{sT0}, v{vT[6]}
v_cmp_eq_u32 vcc, 18, v{vT[6]}
v_mov_b32 v{vT[6]}, 144
v_lshrrev_b32 v{vT[7]}, 1, v{vT[5]}
v_cndmask_b32 v{vT[4]}, v{vT[4]}, v{vT[6]}, vcc
v_mul_u32_u24 v{vT[4]}, {RSV}, v{vT[4]}
v_lshl_add_u32 v{vT[4]}, v{vT[7]}, 5, v{vT[4]}
v_and_b32 v{vT[5]}, 1, v{vT[5]}
v_lshl_add_u32 v{dst}, v{vT[5]}, 3, v{vT[4]}
v_add_u32 v{dst}, {STG}, v{dst}''')
    g(f'v_lshlrev_b32 v{vB}, 4, v{vLane}')
    g('s_waitcnt lgkmcnt(0)')
    g('s_barrier')
    stamp(g, opts, 'g1', 6)
    d0 = CP
    for tau in range(4):
        d = d0 + 8*tau
        g(f'ds_read2_b64 v[{d}:{d+3}], v{vA} offset0:{tau*8} offset1:{tau*8+2}')
        g(f'ds_read2_b64 v[{d+4}:{d+7}], v{vA2} offset0:{tau*8} offset1:{tau*8+2}')
    for tau in range(4):
        d = d0 + 8*tau
        g(f's_waitcnt lgkmcnt({2*(3-tau)})')
        g(f'buffer_store_dwordx4 v[{d}:{d+3}], v{vB}, s[{SO}:{SO+3}], s{sOutBase} offen')
        set_exec(g, (1 << 12) - 1)
        g(f'buffer_store_dwordx4 v[{d+4}:{d+7}], v{vB}, s[{SO}:{SO+3}], s{sOutBase} offen offset:1024')
        g('s_mov_b64 exec, -1')
        if tau < 3: g(f's_add_u32 s{sOutBase}, s{sOutBase}, s{sGS}')
    kg_end()
    stamp(g, opts, 'g1', 7)
    g(f's_branch {done_label}')
```

```python
from asmlib import *
from layout import *
import struct
import k_kgen

def f32bits(x): return struct.unpack('<I', struct.pack('<f', x))[0]

STAGE = 17408
import os
NSLOT = int(os.environ.get('NSLOT', 6))
NKS = 18
RSQ = 296
RSV = 264
STG = {4: None, 5: 3 * 17408 - 0, 6: 0, 7: 4 * 17408}[NSLOT] if NSLOT != 5 else None
KG_BASE = NSLOT * STAGE
LDS_BYTES = KG_BASE + 4 * k_kgen.TASK_LDS + 2 * k_kgen.TAB_LDS

def srd(g, s, kernarg_off):
    g(f's_load_dwordx2 s[{s}:{s+1}], s[0:1], {kernarg_off}')
def srd_fin(g, s, size):
    g(f's_mov_b32 s{s+2}, {size}')
    g(f's_mov_b32 s{s+3}, 0x20000')

def set_exec(g, mask):
    if mask == (1 << 64) - 1:
        g('s_mov_b64 exec, -1')
    elif mask < (1 << 31):
        g(f's_mov_b64 exec, {mask:#x}')
    else:
        lo = mask & 0xffffffff; hi = mask >> 32
        g('s_mov_b32 exec_lo, -1' if lo == 0xffffffff else f's_mov_b32 exec_lo, {lo:#x}')
        g('s_mov_b32 exec_hi, -1' if hi == 0xffffffff else f's_mov_b32 exec_hi, {hi:#x}')

def gen_qkv_gemm(g, done_label, opts={}):
    SX, SW, SO = 4, 8, 12
    sWave, sTw, sLw, sMt, sNt, sSec = 16, 17, 18, 19, 20, 21
    sKx, sKw, sKc, sMX, sMW, sT0, sT1, sT2, sScale, sGS, sOutBase, sKx2 = 22, 23, 24, 25, 26, 27, 28, 29, 30, 31, 32, 33
    V = Regs(1, 128)
    vLane = V.alloc(); vG = V.alloc(); vI = V.alloc()
    vXg = V.alloc(); vWg = V.alloc(3); V.alloc(2)
    vXr = V.alloc(3); vWr = V.alloc(3)
    vEw = V.alloc()
    V.alloc()
    vT = [V.alloc() for i in range(8)]
    VC = Regs(V.next, 256)
    acc = VC.alloc(72, 4)
    fr = [VC.alloc(44, 4), VC.alloc(44, 4)]
    kg = k_kgen.KGen(V.next, 256, 76, vLane)
    CP = 200
    assert sScale % 2 == 0 and vT[6] % 2 == 0
    usekg = not opts.get('nokg')
    LCOMP = g.newlabel('g1_comp'); LKG = g.newlabel('g1_kg'); LQE = g.newlabel('qk_epi'); LVE = g.newlabel('v_epi')
    g(f'v_lshrrev_b32 v{vT[0]}, 6, v0')
    g(f'v_and_b32 v{vLane}, 63, v0')
    g(f'v_readfirstlane_b32 s{sWave}, v{vT[0]}')
    g(f's_cmp_lt_u32 s{sWave}, 4')
    g(f's_cbranch_scc1 {LCOMP}')
    load_kernargs(g, [B_X, B_WQKV, P_WS])
    def tile_map():
        g(f'''s_and_b32 s{sT0}, s2, 7
s_lshr_b32 s{sT1}, s2, 3
s_and_b32 s{sMt}, s{sT0}, 3
s_lshl_b32 s{sMt}, s{sMt}, 2
s_and_b32 s{sT2}, s{sT1}, 3
s_add_u32 s{sMt}, s{sMt}, s{sT2}
s_lshr_b32 s{sNt}, s{sT0}, 2
s_mul_i32 s{sNt}, s{sNt}, 6
s_lshr_b32 s{sT2}, s{sT1}, 2
s_add_u32 s{sNt}, s{sNt}, s{sT2}
s_lshr_b32 s{sSec}, s{sNt}, 2''')
    tile_map()
    ra, rb, rc = [int(x) for x in opts.get('rot', '5,20,7').split(',')]
    g(f'''s_and_b32 s{sT2}, s{sT1}, 3
s_mul_i32 s{sKc}, s{sT2}, {ra}
s_lshr_b32 s{sT2}, s{sT1}, 2
s_mul_i32 s{sT2}, s{sT2}, {rb}
s_add_u32 s{sKc}, s{sKc}, s{sT2}
s_mul_i32 s{sT2}, s{sT0}, {rc}
s_add_u32 s{sKc}, s{sKc}, s{sT2}
s_mul_i32 s{sT2}, s{sKc}, 3641
s_lshr_b32 s{sT2}, s{sT2}, 16
s_mul_i32 s{sT2}, s{sT2}, 18
s_sub_u32 s{sKc}, s{sKc}, s{sT2}
s_lshl_b32 s{sKx}, s{sKc}, 6
s_mul_i32 s{sKw}, s{sKc}, {32*3456}
s_sub_u32 s{sLw}, s{sWave}, 4''')
    g(f'''v_lshrrev_b32 v{vT[0]}, 2, v{vLane}
v_and_b32 v{vT[1]}, 3, v{vLane}
v_lshrrev_b32 v{vT[2]}, 2, v{vT[0]}
v_and_b32 v{vT[2]}, 2, v{vT[2]}
v_xor_b32 v{vT[1]}, v{vT[1]}, v{vT[2]}
s_lshl_b32 s{sT0}, s{sMt}, 7
s_lshl_b32 s{sT1}, s{sLw}, 5
s_add_u32 s{sT0}, s{sT0}, s{sT1}
v_add_u32 v{vT[0]}, s{sT0}, v{vT[0]}
v_mul_u32_u24 v{vT[0]}, 1152, v{vT[0]}
v_lshl_add_u32 v{vXg}, v{vT[1]}, 4, v{vT[0]}''')
    g(f's_mul_i32 s{sT1}, s{sNt}, 288')
    g(f's_lshl_b32 s{sT0}, s{sLw}, 7')
    for jj in range(3):
        if jj < 2: g(f'v_add_u32 v{vT[0]}, s{sT0}, v{vLane}'); g(f's_add_u32 s{sT0}, s{sT0}, 64')
        else: g(f'v_add_u32 v{vT[0]}, 512, v{vLane}')
        g(f'''v_mul_u32_u24 v{vT[1]}, 3641, v{vT[0]}
v_lshrrev_b32 v{vT[1]}, 16, v{vT[1]}
v_mul_u32_u24 v{vT[2]}, 18, v{vT[1]}
v_sub_u32 v{vT[2]}, v{vT[0]}, v{vT[2]}
v_and_b32 v{vT[3]}, 19, v{vT[1]}
v_bfe_u32 v{vT[4]}, v{vT[1]}, 2, 1
v_lshl_add_u32 v{vT[3]}, v{vT[4]}, 3, v{vT[3]}
v_bfe_u32 v{vT[4]}, v{vT[1]}, 3, 1
v_lshl_add_u32 v{vT[3]}, v{vT[4]}, 2, v{vT[3]}
v_mul_u32_u24 v{vT[3]}, 3456, v{vT[3]}
v_lshl_add_u32 v{vT[3]}, v{vT[2]}, 4, v{vT[3]}
v_add_u32 v{vWg+jj}, s{sT1}, v{vT[3]}''')
    g(f's_lshl_b32 s{sMX}, s{sLw}, 11')
    g(f's_add_u32 s{sMW}, s{sMX}, 8192')
    g('s_waitcnt lgkmcnt(0)')
    srd_from(g, SX, B_X, L*D*2); srd_from(g, SW, B_WQKV, D*3*D*2); srd_from(g, SO, P_WS, WS_USED)
    stamp(g, opts, 'g1', 0)
    NL = 4
    def dma_stage(s):
        sb = (s % NSLOT) * STAGE
        for j in range(2):
            g(f's_add_u32 m0, s{sMX}, {sb + 1024*j}')
            g(f's_add_u32 s{sKx2}, s{sKx}, {16*1152*j}')
            g(f'buffer_load_dwordx4 v{vXg}, s[{SX}:{SX+3}], s{sKx2} offen lds')
            g(f's_add_u32 m0, s{sMW}, {sb + 1024*j}')
            if j == 0: g(f's_add_u32 s{sKc}, s{sKc}, 1')
            else: g(f's_cmp_eq_u32 s{sLw}, {s % 4}')
            g(f'buffer_load_dwordx4 v{vWg+j}, s[{SW}:{SW+3}], s{sKw} offen lds')
        Ls = g.newlabel('nox')
        g(f's_mov_b32 m0, {sb + 8192 + 8192}')
        g(f's_cbranch_scc0 {Ls}')
        g(f'buffer_load_dwordx4 v{vWg+2}, s[{SW}:{SW+3}], s{sKw} offen lds')
        g.label(Ls)
        g(f's_add_u32 s{sKx}, s{sKx}, 64')
        g(f's_add_u32 s{sKw}, s{sKw}, {32*3456}')
        g(f's_cmp_eq_u32 s{sKc}, {NKS}')
        g(f's_cselect_b32 s{sKc}, 0, s{sKc}')
        g(f's_cselect_b32 s{sKx}, 0, s{sKx}')
        g(f's_cselect_b32 s{sKw}, 0, s{sKw}')
    g('s_barrier')
    NPRO = int(opts.get('npro', 5))
    for s in range(NPRO): dma_stage(s)
    issued = NPRO
    stamp(g, opts, 'g1', 1)
    g(f's_waitcnt vmcnt({NL*(issued-1)})')
    g('s_barrier')
    stamp(g, opts, 'g1', 3)
    depth = int(opts.get('depth', NSLOT))
    n = 0
    while issued < min(NKS, depth) and n < 2:
        dma_stage(issued); issued += 1; n += 1
    def kg_setup():
        g(f'''s_lshr_b32 s{sT0}, s{sLw}, 1
s_lshl_b32 s{kg.sCh}, s2, 1
s_add_u32 s{kg.sCh}, s{kg.sCh}, s{sT0}
s_and_b32 s{kg.sHf}, s{sLw}, 1
s_mul_i32 s{kg.sLB}, s{sT0}, {2*k_kgen.TASK_LDS}
s_add_u32 s{kg.sLB}, s{kg.sLB}, {KG_BASE}
s_mul_i32 s{kg.sTB}, s{sT0}, {k_kgen.TAB_LDS}
s_add_u32 s{kg.sTB}, s{kg.sTB}, {KG_BASE + 4*k_kgen.TASK_LDS}''')
    for s in range(NKS - 1):
        g(f's_waitcnt vmcnt({NL*max(issued - 1 - (s+1), 0)})')
        g('s_barrier')
        n = 0
        while issued < NKS and issued <= s + depth and n < 2:
            dma_stage(issued); issued += 1; n += 1
        if s == 5: stamp(g, opts, 'g1', 4)
        if usekg and s == 10: kg_setup()
        if usekg and 11 <= s <= 14:
            Lf = g.newlabel('g1_fin')
            g(f's_cmp_eq_u32 s{kg.sHf}, 1')
            g(f's_cbranch_scc1 {Lf}')
            if s == 13: g('s_waitcnt lgkmcnt(0)')
            for l in kg.finish_chunks()[s - 11]: g(l)
            if s == 14: g('s_waitcnt lgkmcnt(0)')
            g.label(Lf)
        if usekg and s == 16: kg.tail3(g, SO)
    stamp(g, opts, 'g1', 5)
    g(f's_cmp_eq_u32 s{sSec}, 2')
    g(f's_cbranch_scc1 {LVE}')
    g(f's_branch {LQE}')

    g.label(LCOMP)
    g(f's_mov_b32 s{sTw}, s{sWave}')
    if usekg:
        load_kernargs(g, [A_LAR, A_AIM, A_CR, A_CI, A_LDT])
        g(f'''s_lshr_b32 s{sT0}, s{sTw}, 1
s_lshl_b32 s{kg.sCh}, s2, 1
s_add_u32 s{kg.sCh}, s{kg.sCh}, s{sT0}
s_and_b32 s{kg.sHf}, s{sTw}, 1
s_mul_i32 s{kg.sLB}, s{sTw}, {k_kgen.TASK_LDS}
s_add_u32 s{kg.sLB}, s{kg.sLB}, {KG_BASE}''')
        g('s_waitcnt lgkmcnt(0)')
        kg.loads(g)
    load_kernargs(g, [P_WS])
    tile_map()
    g('s_barrier')
    if usekg:
        g('s_waitcnt vmcnt(0)')
        stamp(g, opts, 'g1', 2)
        if opts.get('kgdup'):
            p0 = kg.prm[0]
            for r in range(9): g(f'v_mov_b32 v{240+r}, v{p0+r}')
            for l in kg.body(): g('s_waitcnt lgkmcnt(0)' if l == 'NEXT' else l)
            for r in range(9): g(f'v_mov_b32 v{p0+r}, v{240+r}')
        for l in kg.body(): g('s_waitcnt lgkmcnt(0)' if l == 'NEXT' else l)
        kg.publish(g)
    g(f'v_lshrrev_b32 v{vG}, 4, v{vLane}')
    g(f'v_and_b32 v{vI}, 15, v{vLane}')
    g(f'''v_lshrrev_b32 v{vT[0]}, 2, v{vI}
v_and_b32 v{vT[0]}, 2, v{vT[0]}
v_xor_b32 v{vT[0]}, v{vT[0]}, v{vG}
v_lshlrev_b32 v{vT[0]}, 4, v{vT[0]}
s_lshl_b32 s{sT0}, s{sTw}, 5
v_add_u32 v{vT[1]}, s{sT0}, v{vI}
v_lshl_add_u32 v{vXr}, v{vT[1]}, 6, v{vT[0]}''')
    g(f'''v_lshrrev_b32 v{vT[0]}, 1, v{vG}
v_lshlrev_b32 v{vT[0]}, 4, v{vT[0]}
v_and_b32 v{vT[1]}, 1, v{vG}
v_lshl_add_u32 v{vT[0]}, v{vT[1]}, 2, v{vT[0]}
v_lshrrev_b32 v{vT[1]}, 2, v{vI}
v_add_u32 v{vT[0]}, v{vT[0]}, v{vT[1]}
v_mul_u32_u24 v{vT[0]}, 288, v{vT[0]}
v_and_b32 v{vT[1]}, 3, v{vI}
v_lshl_add_u32 v{vWr}, v{vT[1]}, 3, v{vT[0]}
v_add_u32 v{vXr+1}, {3*STAGE}, v{vXr}
v_add_u32 v{vWr+1}, {3*STAGE}, v{vWr}
v_add_u32 v{vXr+2}, {6*STAGE}, v{vXr}
v_add_u32 v{vWr+2}, {6*STAGE}, v{vWr}''')
    g('s_waitcnt lgkmcnt(0)')
    srd_from(g, SO, P_WS, WS_USED)
    LV = g.newlabel('qkv_v')
    NCT = 9
    def mainloop(isV):
        def reads(s, fs):
            sl = s % NSLOT
            bank = sl // 3
            sb = (sl % 3) * STAGE
            ax = vXr + bank; aw = vWr + bank
            out = []
            for m in range(2):
                out.append(f'ds_read_b128 v[{fs+4*m}:{fs+4*m+3}], v{ax} offset:{sb + m*1024}')
            for c in range(NCT):
                for h in range(2):
                    r = fs + 8 + 4*c + 2*h
                    out.append(f'ds_read_b64_tr_b16 v[{r}:{r+1}], v{aw} offset:{sb + 8192 + h*2304 + c*32}')
            return out
        def mfmas(s, fs):
            out = []
            for c in range(NCT):
                for m in range(2):
                    a = acc + (c*2+m)*4
                    xf = f'v[{fs+4*m}:{fs+4*m+3}]'; wf = f'v[{fs+8+4*c}:{fs+8+4*c+3}]'
                    A, B = (xf, wf) if isV else (wf, xf)
                    C = '0' if s == 0 else f'v[{a}:{a+3}]'
                    out.append(f'v_mfma_f32_16x16x32_bf16 v[{a}:{a+3}], {A}, {B}, {C}')
            return out
        def stage_out(t, scale):
            c, m = t // 2, t % 2
            a = acc + t*4
            out = []
            if scale:
                out.append(f'v_pk_mul_f32 v[{a}:{a+1}], v[{a}:{a+1}], s[{sScale}:{sScale+1}] op_sel_hi:[1,0]')
                out.append(f'v_pk_mul_f32 v[{a+2}:{a+3}], v[{a+2}:{a+3}], s[{sScale}:{sScale+1}] op_sel_hi:[1,0]')
            out.append(f'v_cvt_pk_bf16_f32 v{a}, v{a}, v{a+1}')
            out.append(f'v_cvt_pk_bf16_f32 v{a+1}, v{a+2}, v{a+3}')
            off = (c*16*RSV + m*32) if isV else (c*32 + m*16*RSQ)
            out.append(f'ds_write_b64 v{vEw}, v[{a}:{a+1}] offset:{off}')
            return out
        g('s_barrier')
        for l in reads(0, fr[0]): g(l)
        for s in range(NKS - 1):
            g('s_waitcnt lgkmcnt(0)')
            g('s_barrier')
            rd = reads(s+1, fr[(s+1) % 2])
            mf = mfmas(s, fr[s % 2])
            k = 0
            for i, m_ in enumerate(mf):
                g(m_)
                nrd = 2 if i < 2 else 1
                for _ in range(nrd):
                    if k < len(rd): g(rd[k]); k += 1
            while k < len(rd): g(rd[k]); k += 1
        g('s_waitcnt lgkmcnt(0)')
        mf = mfmas(NKS-1, fr[(NKS-1) % 2])
        LAG = 4
        def last(scale):
            for i in range(len(mf) + LAG):
                if i < len(mf): g(mf[i])
                if i >= LAG:
                    for l in stage_out(i - LAG, scale): g(l)
        if isV:
            last(False)
        else:
            Lq = g.newlabel('g1_q'); Lz = g.newlabel('g1_z')
            g(f's_cmp_eq_u32 s{sSec}, 0')
            g(f's_cbranch_scc1 {Lq}')
            last(False)
            g(f's_branch {Lz}')
            g.label(Lq)
            g(f's_mov_b32 s{sScale}, {f32bits(QSCALE):#x}')
            last(True)
            g.label(Lz)
    g(f's_cmp_eq_u32 s{sSec}, 2')
    g(f's_cbranch_scc1 {LV}')
    g(f'''s_lshl_b32 s{sT0}, s{sTw}, 5
v_add_u32 v{vT[0]}, s{sT0}, v{vI}
v_mul_u32_u24 v{vT[0]}, {RSQ}, v{vT[0]}
v_lshl_add_u32 v{vEw}, v{vG}, 3, v{vT[0]}
v_add_u32 v{vEw}, {STG}, v{vEw}''')
    mainloop(False)
    g(f's_branch {LQE}')
    g.label(LV)
    g(f'''v_mul_u32_u24 v{vT[0]}, {RSV}, v{vI}
v_lshl_add_u32 v{vT[0]}, v{vG}, 3, v{vT[0]}
s_lshl_b32 s{sT0}, s{sTw}, 6
s_add_u32 s{sT0}, s{sT0}, {STG}
v_add_u32 v{vEw}, s{sT0}, v{vT[0]}''')
    mainloop(True)
    g(f's_branch {LVE}')

    def outbase():
        g(f'''s_cmp_eq_u32 s{sSec}, 0
s_mov_b32 s{sGS}, {REC}
s_cselect_b32 s{sGS}, {REC_K}, s{sGS}
s_and_b32 s{sT0}, s{sNt}, 3
s_lshl_b32 s{sT0}, s{sT0}, 3
s_add_u32 s{sT0}, s{sT0}, s{sWave}
s_lshl_b32 s{sT0}, s{sT0}, 6
s_lshl_b32 s{sT1}, s{sMt}, 2
s_add_u32 s{sT0}, s{sT0}, s{sT1}
s_mul_i32 s{sOutBase}, s{sT0}, s{sGS}
s_cmp_eq_u32 s{sSec}, 0
s_cselect_b32 s{sT1}, {Q_OFF}, {KV_OFF}
s_add_u32 s{sOutBase}, s{sOutBase}, s{sT1}
s_cmp_eq_u32 s{sSec}, 2
s_cselect_b32 s{sT1}, {REC_K}, 0
s_add_u32 s{sOutBase}, s{sOutBase}, s{sT1}''')
    def kg_end():
        return

    g.label(LQE)
    outbase()
    vA, vB, vC, vD = vT[0], vT[1], vT[2], vT[3]
    g(f'''v_and_b32 v{vA}, 31, v{vLane}
v_mul_u32_u24 v{vA}, {RSQ}, v{vA}
v_lshrrev_b32 v{vB}, 5, v{vLane}
v_lshl_add_u32 v{vA}, v{vB}, 4, v{vA}
s_mul_i32 s{sT0}, s{sWave}, 36
s_add_u32 s{sT0}, s{sT0}, {STG}
v_add_u32 v{vA}, s{sT0}, v{vA}
v_lshlrev_b32 v{vB}, 4, v{vLane}''')
    g(f'''v_lshrrev_b32 v{vC}, 3, v{vLane}
v_and_b32 v{vD}, 7, v{vLane}
v_mul_lo_u32 v{vT[4]}, v{vC}, s{sGS}
v_lshl_add_u32 v{vT[4]}, v{vD}, 4, v{vT[4]}
v_add_u32 v{vT[4]}, 1024, v{vT[4]}
v_lshlrev_b32 v{vC}, 5, v{vC}
v_lshl_add_u32 v{vC}, v{vD}, 2, v{vC}
v_mul_u32_u24 v{vC}, {RSQ}, v{vC}
s_add_u32 s{sT0}, s{sT0}, 32
v_add_u32 v{vC}, s{sT0}, v{vC}''')
    g('s_waitcnt lgkmcnt(0)')
    g('s_barrier')
    stamp(g, opts, 'g1', 6)
    d0 = CP
    for tau in range(4):
        d = d0 + 4*tau
        g(f'ds_read2_b32 v[{d}:{d+1}], v{vA} offset0:0 offset1:1')
        g(f'ds_read2_b32 v[{d+2}:{d+3}], v{vA} offset0:2 offset1:3')
        if tau < 3: g(f'v_add_u32 v{vA}, {32*RSQ}, v{vA}')
    d = d0 + 16
    set_exec(g, (1 << 32) - 1)
    g(f'ds_read2_b32 v[{d}:{d+1}], v{vC} offset0:0 offset1:{RSQ//4}')
    g(f'ds_read2_b32 v[{d+2}:{d+3}], v{vC} offset0:{2*RSQ//4} offset1:{3*RSQ//4}')
    g('s_mov_b64 exec, -1')
    for tau in range(4):
        d = d0 + 4*tau
        g(f's_waitcnt lgkmcnt({2*(3-tau)+2})')
        g(f'buffer_store_dwordx4 v[{d}:{d+3}], v{vB}, s[{SO}:{SO+3}], s{sOutBase} offen')
        if tau < 3:
            g(f's_add_u32 s{sOutBase}, s{sOutBase}, s{sGS}')
    g(f's_mul_i32 s{sT0}, s{sGS}, 3')
    g(f's_sub_u32 s{sOutBase}, s{sOutBase}, s{sT0}')
    g('s_waitcnt lgkmcnt(0)')
    set_exec(g, (1 << 32) - 1)
    d = d0 + 16
    g(f'buffer_store_dwordx4 v[{d}:{d+3}], v{vT[4]}, s[{SO}:{SO+3}], s{sOutBase} offen')
    g('s_mov_b64 exec, -1')
    kg_end()
    stamp(g, opts, 'g1', 7)
    g(f's_branch {done_label}')

    g.label(LVE)
    outbase()
    g(f'''v_mov_b32 v{vT[6]}, 0x3f803f80
v_mov_b32 v{vT[7]}, 0x3f803f80
v_lshlrev_b32 v{vT[0]}, 3, v{vLane}
v_add_u32 v{vT[0]}, {STG + 144*RSV}, v{vT[0]}''')
    set_exec(g, (1 << 32) - 1)
    g(f'ds_write_b64 v{vT[0]}, v[{vT[6]}:{vT[7]}]')
    g('s_mov_b64 exec, -1')
    vA, vA2, vB, vB2 = vT[0], vT[1], vT[2], vT[3]
    g(f's_mul_i32 s{sT0}, s{sWave}, 18')
    for (dst, add) in ((vA, 0), (vA2, 64)):
        g(f'''v_add_u32 v{vT[4]}, {add}, v{vLane}
v_mul_u32_u24 v{vT[5]}, 3450, v{vT[4]}
v_lshrrev_b32 v{vT[5]}, 16, v{vT[5]}
v_mul_u32_u24 v{vT[6]}, 19, v{vT[5]}
v_sub_u32 v{vT[6]}, v{vT[4]}, v{vT[6]}
v_add_u32 v{vT[4]}, s{sT0}, v{vT[6]}
v_cmp_eq_u32 vcc, 18, v{vT[6]}
v_mov_b32 v{vT[6]}, 144
v_lshrrev_b32 v{vT[7]}, 1, v{vT[5]}
v_cndmask_b32 v{vT[4]}, v{vT[4]}, v{vT[6]}, vcc
v_mul_u32_u24 v{vT[4]}, {RSV}, v{vT[4]}
v_lshl_add_u32 v{vT[4]}, v{vT[7]}, 5, v{vT[4]}
v_and_b32 v{vT[5]}, 1, v{vT[5]}
v_lshl_add_u32 v{dst}, v{vT[5]}, 3, v{vT[4]}
v_add_u32 v{dst}, {STG}, v{dst}''')
    g(f'v_lshlrev_b32 v{vB}, 4, v{vLane}')
    g('s_waitcnt lgkmcnt(0)')
    g('s_barrier')
    stamp(g, opts, 'g1', 6)
    d0 = CP
    for tau in range(4):
        d = d0 + 8*tau
        g(f'ds_read2_b64 v[{d}:{d+3}], v{vA} offset0:{tau*8} offset1:{tau*8+2}')
        g(f'ds_read2_b64 v[{d+4}:{d+7}], v{vA2} offset0:{tau*8} offset1:{tau*8+2}')
    for tau in range(4):
        d = d0 + 8*tau
        g(f's_waitcnt lgkmcnt({2*(3-tau)})')
        g(f'buffer_store_dwordx4 v[{d}:{d+3}], v{vB}, s[{SO}:{SO+3}], s{sOutBase} offen')
        set_exec(g, (1 << 12) - 1)
        g(f'buffer_store_dwordx4 v[{d+4}:{d+7}], v{vB}, s[{SO}:{SO+3}], s{sOutBase} offen offset:1024')
        g('s_mov_b64 exec, -1')
        if tau < 3: g(f's_add_u32 s{sOutBase}, s{sOutBase}, s{sGS}')
    kg_end()
    stamp(g, opts, 'g1', 7)
    g(f's_branch {done_label}')
```

```python
from asmlib import *
from layout import *
from k_gemm1 import srd, srd_fin, set_exec, f32bits
import math
import k_gemm3, k_kgen

def transpose_pass(g, SSRC, SDST, sSrc, sDst, src_rowstride, dst_rowstride, vLane, vT, base, coalesced_store):
    A = base; B = base + 32
    for e in range(8):
        off = e * src_rowstride
        if off < 4096:
            g(f'buffer_load_dwordx4 v[{A+4*e}:{A+4*e+3}], v{vT[0]}, s[{SSRC}:{SSRC+3}], s{sSrc} offen offset:{off}')
        else:
            g(f'v_add_u32 v{vT[2]}, {off}, v{vT[0]}')
            g(f'buffer_load_dwordx4 v[{A+4*e}:{A+4*e+3}], v{vT[2]}, s[{SSRC}:{SSRC+3}], s{sSrc} offen')
    g('s_waitcnt vmcnt(0)')
    return A, B

def emit_8x8(g, A, B, sT0, sT1):
    g(f's_mov_b32 s{sT0}, 0x05040100')
    g(f's_mov_b32 s{sT1}, 0x07060302')
    for c in range(8):
        for k in range(4):
            sel = sT0 if c % 2 == 0 else sT1
            g(f'v_perm_b32 v{B+4*c+k}, v{A+4*(2*k+1)+(c>>1)}, v{A+4*(2*k)+(c>>1)}, s{sel}')

AUX_LDS = 6 * k_kgen.TASK_LDS + 3 * k_kgen.TAB_LDS
def gen_l1_aux(g, done_label, opts={}):
    SWS, SU, SWO = 4, 8, 12
    sWave, sT0, sT1, sT2, sT3, sA, sB, sF, sTd, sDoT, sF2 = range(16, 27)
    vLane = 1
    kg = k_kgen.KGen(132, 256, 76, vLane)
    g('v_lshrrev_b32 v2, 6, v0')
    g(f'v_and_b32 v{vLane}, 63, v0')
    g(f'v_readfirstlane_b32 s{sWave}, v2')
    load_kernargs(g, [A_LAR, A_AIM, A_CR, A_CI, A_LDT])
    g(f"""s_lshr_b32 s{sT0}, s{sWave}, 1
s_mul_i32 s{kg.sCh}, s2, 3
s_add_u32 s{kg.sCh}, s{kg.sCh}, s{sT0}
s_add_u32 s{kg.sCh}, s{kg.sCh}, 384
s_min_u32 s{kg.sCh}, s{kg.sCh}, 575
s_and_b32 s{kg.sHf}, s{sWave}, 1
s_mul_i32 s{kg.sLB}, s{sWave}, {k_kgen.TASK_LDS}
s_mul_i32 s{kg.sTB}, s{sT0}, {k_kgen.TAB_LDS}
s_add_u32 s{kg.sTB}, s{kg.sTB}, {6*k_kgen.TASK_LDS}""")
    g('s_waitcnt lgkmcnt(0)')
    kg.loads(g)
    load_kernargs(g, [A_U, B_WO, P_WS])
    g(f"""s_lshr_b32 s{sA}, s{sWave}, 1
s_lshl_b32 s{sA}, s{sA}, 6
s_add_u32 s{sA}, s{sA}, s2
s_cmp_lt_u32 s{sA}, 144
s_cselect_b32 s{sDoT}, 1, 0
s_lshr_b32 s{sB}, s{sA}, 4
s_lshl_b32 s{sB}, s{sB}, 1
s_and_b32 s{sT0}, s{sWave}, 1
s_add_u32 s{sB}, s{sB}, s{sT0}
s_and_b32 s{sA}, s{sA}, 15
s_mul_i32 s{sT0}, s{sA}, {128*1152}
s_lshl_b32 s{sT1}, s{sB}, 6
s_add_u32 s{sF2}, s{sT0}, s{sT1}
s_mul_i32 s{sTd}, s{sB}, {32*4096}
s_lshl_b32 s{sA}, s{sA}, 8
s_add_u32 s{sTd}, s{sTd}, s{sA}
s_add_u32 s{sTd}, s{sTd}, {UT_OFF}""")
    ta, tb, tc, td = 2, 3, 4, 5
    g(f'v_and_b32 v{tc}, 15, v{vLane}')
    g(f'v_lshrrev_b32 v{td}, 4, v{vLane}')
    g(f'v_mul_u32_u24 v{ta}, {8*1152}, v{tc}')
    g(f'v_lshl_add_u32 v{ta}, v{td}, 4, v{ta}')
    g(f'v_lshlrev_b32 v{tb}, 15, v{td}')
    g(f'v_lshl_add_u32 v{tb}, v{tc}, 4, v{tb}')
    g('s_waitcnt lgkmcnt(0)')
    srd_from(g, SWS, P_WS, WS_USED); srd_from(g, SU, A_U, L*D*2); srd_from(g, SWO, B_WO, D*D*2)
    A, B = 8, 40
    def tr_loads():
        LNT = g.newlabel('aux_notr')
        g(f's_cmp_eq_u32 s{sDoT}, 0')
        g(f's_cbranch_scc1 {LNT}')
        g(f's_mov_b32 s{sT0}, s{sF2}')
        for e in range(8):
            if e == 4: g(f's_add_u32 s{sT0}, s{sT0}, {4*1152}')
            g(f'buffer_load_dwordx4 v[{A+4*e}:{A+4*e+3}], v{ta}, s[{SU}:{SU+3}], s{sT0} offen offset:{(e % 4)*1152}')
        g.label(LNT)
    LMV = g.newlabel('aux_mv')
    g(f's_cmp_ge_u32 s{sWave}, 6')
    g(f's_cbranch_scc1 {LMV}')
    g('s_waitcnt vmcnt(0)')
    stamp(g, opts, 'aux', 0)
    body = kg.body()
    half = 200
    for l in body[:half]: g('s_waitcnt lgkmcnt(0)' if l == 'NEXT' else l)
    tr_loads()
    for l in body[half:]: g('s_waitcnt lgkmcnt(0)' if l == 'NEXT' else l)
    kg.tail1(g)
    LJ = g.newlabel('aux_j')
    g(f's_branch {LJ}')
    g.label(LMV)
    g(f's_lshl_b32 s{sF}, s2, 1')
    g(f's_add_u32 s{sF}, s{sF}, s{sWave}')
    g(f's_sub_u32 s{sF}, s{sF}, 6')
    for grp in range(2):
        idx = []
        for i in range(3):
            si = 27 + i
            g(f's_add_u32 s{si}, s{sF}, {128*(3*grp+i)}')
            g(f's_min_u32 s{si}, s{si}, 647')
            k_gemm3.wot_loads(g, SWO, si, (sT0, sT1, sT2, sT3), vLane, 8 + 16*i)
        g('s_waitcnt vmcnt(0)')
        for i in range(3): k_gemm3.wot_store(g, SWS, 27 + i, sT0, vLane, 8 + 16*i)
    g.label(LJ)
    stamp(g, opts, 'aux', 1)
    g('s_waitcnt lgkmcnt(0)')
    g('s_barrier')
    stamp(g, opts, 'aux', 2)
    LN2 = g.newlabel('aux_nok2')
    g(f's_cmp_ge_u32 s{sWave}, 6')
    g(f's_cbranch_scc1 {LN2}')
    kg.tail2(g)
    g.label(LN2)
    LNT2 = g.newlabel('aux_notr2')
    g(f's_cmp_eq_u32 s{sDoT}, 0')
    g(f's_cbranch_scc1 {LNT2}')
    g('s_waitcnt vmcnt(0)')
    emit_8x8(g, A, B, sT2, sT3)
    for c in range(8):
        g(f'buffer_store_dwordx4 v[{B+4*c}:{B+4*c+3}], v{tb}, s[{SWS}:{SWS+3}], s{sTd} offen')
        if c < 7: g(f's_add_u32 s{sTd}, s{sTd}, 4096')
    g.label(LNT2)
    g('s_waitcnt lgkmcnt(0)')
    g('s_barrier')
    stamp(g, opts, 'aux', 3)
    LN3 = g.newlabel('aux_nok3')
    g(f's_cmp_ge_u32 s{sWave}, 6')
    g(f's_cbranch_scc1 {LN3}')
    kg.tail3(g, SWS)
    g.label(LN3)
    g(f's_branch {done_label}')

CONV_CH = KIMG_STRIDE + 512 + 4096 + KTAB_STRIDE
CONV_LDS = 4 * CONV_CH

def gen_expand(g, sTB, sLB, sT0, vLane, vT, fr):
    vO, vM, vAd = vT[0], vT[1], vT[2]
    g(f'v_lshlrev_b32 v{vO}, 4, v{vLane}')
    g(f'v_add_u32 v{vO}, s{sLB}, v{vO}')
    def st(D, it):
        g(f'ds_write_b128 v{vO}, v[{D}:{D+3}] offset:{1024*it}')
        g(f'ds_write_b128 v{vO}, v[{D+4}:{D+7}] offset:{KIMG_COPY + 1024*it}')
    sels = {}
    def sel(x):
        return x
    LO, HI, M1, M2, M3 = 40, 41, 42, 43, 46
    for r, v in ((LO, 0x01000100), (HI, 0x03020302), (M1, 0x05040100), (M2, 0x01000302), (M3, 0x07060100)): g(f's_mov_b32 s{r}, {v:#x}')
    def perm(dst, a, b, s_): g(f'v_perm_b32 v{dst}, v{a}, v{b}, s{s_}')
    p3 = [fr + 48, fr + 50]
    for it in range(2):
        g(f'v_sub_u32 v{vM}, {255 - 64*it}, v{vLane}')
        g(f'v_lshlrev_b32 v{vAd}, 1, v{vM}')
        g(f'v_add_u32 v{vAd}, s{sTB}, v{vAd}')
        g(f'ds_read_u16 v{p3[it]}, v{vAd} offset:{2*384}')
        g(f'ds_read_u16 v{p3[it]+1}, v{vAd} offset:{2*385}')
    p2 = fr + 52
    g(f'v_sub_u32 v{vM}, 127, v{vLane}')
    g(f'v_lshlrev_b32 v{vAd}, 2, v{vM}')
    g(f'v_add_u32 v{vAd}, s{sTB}, v{vAd}')
    g(f'ds_read_u16 v{p2}, v{vAd} offset:{2*256}')
    g(f'ds_read_u16 v{p2+2}, v{vAd} offset:{2*257}')
    g(f'ds_read_u16 v{p2+1}, v{vAd} offset:{2*258}')
    t1, t0 = fr + 56, fr + 57
    g(f'v_sub_u32 v{vM}, 63, v{vLane}')
    g(f'v_lshlrev_b32 v{t1}, 3, v{vM}'); g(f'v_add_u32 v{t1}, 256, v{t1}')
    g(f'v_lshlrev_b32 v{t0}, 4, v{vM}')
    g(f'v_add_u32 v{t1}, s{sTB}, v{t1}'); g(f'v_add_u32 v{t0}, s{sTB}, v{t0}')
    vals = fr + 32
    alt = fr + 16
    oseg1 = [0, 0, 1, 2, 2, 2, 3, 4]
    for j in range(5): g(f'ds_read_u16 v{alt+j}, v{t1} offset:{2*j}')
    for rho in range(8): g(f'ds_read_u16 v{vals+7-rho}, v{t0} offset:{2*rho}')
    g(f'v_subrev_u32 v{t0}, 2, v{t0}')
    g(f'v_max_u32 v{t0}, s{sTB}, v{t0}') if False else None
    g(f'ds_read_u16 v{vals+8}, v{t0}')
    g(f'v_and_b32 v{vM}, 1, v{vLane}')
    g(f'v_cmp_eq_u32 vcc, 1, v{vM}')
    g('s_waitcnt lgkmcnt(0)')
    for it in range(2):
        D = fr + 8*it if it == 0 else fr + 24
        p = p3[it]
        g(f'v_lshl_or_b32 v{p}, v{p+1}, 16, v{p}')
        perm(D, p, p, HI); perm(D+2, p, p, LO); g(f'v_mov_b32 v{D+3}, v{D+2}')
        g(f'v_cndmask_b32 v{p+1}, v{D}, v{D+2}, vcc')
        perm(D+1, p+1, D, M1)
        g(f'v_mov_b32 v{D+4}, v{D}')
        perm(D+5, D+2, p+1, M1)
        g(f'v_mov_b32 v{D+6}, v{D+2}'); g(f'v_mov_b32 v{D+7}, v{D+2}')
        st(D, it)
    D = fr + 8
    g(f'v_lshl_or_b32 v{p2}, v{p2+2}, 16, v{p2}')
    perm(D, p2+1, p2+1, LO); perm(D+1, p2, p2, HI); perm(D+2, p2, p2, M2); perm(D+3, p2, p2, LO)
    O2 = fr + 60
    perm(O2, p2, p2+1, M3)
    g(f'v_mov_b32 v{O2+1}, v{D+1}'); g(f'v_mov_b32 v{O2+2}, v{D+3}'); g(f'v_mov_b32 v{O2+3}, v{D+3}')
    g(f'ds_write_b128 v{vO}, v[{D}:{D+3}] offset:{1024*2}')
    g(f'ds_write_b128 v{vO}, v[{O2}:{O2+3}] offset:{KIMG_COPY + 1024*2}')
    g(f'v_cmp_gt_u32 vcc, 32, v{vLane}')
    for e in range(8): g(f'v_cndmask_b32 v{vals+e}, v{vals+e}, v{alt+oseg1[7-e]}, vcc')
    g(f'v_cmp_gt_u32 vcc, 31, v{vLane}')
    g(f'v_cndmask_b32 v{vals+8}, v{vals+8}, v{alt}, vcc')
    g(f'v_cmp_eq_u32 vcc, 63, v{vLane}')
    g(f'v_mov_b32 v{t1}, 0')
    g(f'v_cndmask_b32 v{vals+8}, v{vals+8}, v{t1}, vcc')
    E = fr + 44; O3 = fr + 48
    for k in range(4): g(f'v_lshl_or_b32 v{E+k}, v{vals+2*k+1}, 16, v{vals+2*k}')
    for k in range(3): g(f'v_alignbit_b32 v{O3+k}, v{E+k+1}, v{E+k}, 16')
    g(f'v_alignbit_b32 v{O3+3}, v{vals+8}, v{E+3}, 16')
    g(f'ds_write_b128 v{vO}, v[{E}:{E+3}] offset:{1024*3}')
    g(f'ds_write_b128 v{vO}, v[{O3}:{O3+3}] offset:{KIMG_COPY + 1024*3}')
    Zr = fr + 52
    for k in range(4): g(f'v_mov_b32 v{Zr+k}, 0')
    set_exec(g, 0xf)
    g(f'ds_write_b128 v{vO}, v[{Zr}:{Zr+3}] offset:4096')
    g(f'ds_write_b128 v{vO}, v[{Zr}:{Zr+3}] offset:{KIMG_COPY + 4096}')
    set_exec(g, (1 << 32) - 1)
    g(f'ds_write_b128 v{vO}, v[{Zr}:{Zr+3}] offset:{KIMG_STRIDE}')
    g('s_mov_b64 exec, -1')

def gen_conv(g, done_label, opts={}):
    SWS = 4
    sWave, sCh, sT0, sT1, sT2, sLB, sTB = range(16, 23)
    V = Regs(1, 128)
    vLane = V.alloc(); vT = [V.alloc() for _ in range(3)]
    vF = V.alloc(8); vG = V.alloc(); vDm = V.alloc(); vDs = V.alloc()
    acc = V.alloc(32, 4); F = V.alloc(32, 4); G = V.alloc(32, 4)
    g(f'v_lshrrev_b32 v{vT[0]}, 6, v0')
    g(f'v_and_b32 v{vLane}, 63, v0')
    g(f'v_readfirstlane_b32 s{sWave}, v{vT[0]}')
    g(f's_cmp_ge_u32 s{sWave}, 4')
    g(f's_cbranch_scc1 {done_label}')
    srd(g, SWS, P_WS)
    g(f's_load_dwordx2 s[8:9], s[0:1], {A_DSK}')
    g(f"""s_lshl_b32 s{sCh}, s2, 2
s_add_u32 s{sCh}, s{sCh}, s{sWave}
s_mul_i32 s{sLB}, s{sWave}, {CONV_CH}
s_add_u32 s{sTB}, s{sLB}, {KIMG_STRIDE + 512 + 4096}
v_lshlrev_b32 v{vDm}, 4, v{vLane}
s_mul_i32 s{sT0}, s{sCh}, {KTAB_STRIDE}
s_add_u32 s{sT0}, s{sT0}, {KTAB_OFF}
s_lshl_b32 s{sT1}, s{sCh}, 12
s_add_u32 s{sT1}, s{sT1}, {UT_OFF}""")
    g('s_waitcnt lgkmcnt(0)')
    srd_fin(g, SWS, WS_USED)
    g(f's_mov_b32 m0, s{sTB}')
    g(f's_add_u32 s{sT2}, s{sLB}, {KIMG_STRIDE + 512}')
    g(f'buffer_load_dwordx4 v{vDm}, s[{SWS}:{SWS+3}], s{sT0} offen lds')
    set_exec(g, (1 << 20) - 1)
    g(f'buffer_load_dwordx4 v{vDm}, s[{SWS}:{SWS+3}], s{sT0} offen offset:1024 lds')
    g('s_mov_b64 exec, -1')
    g(f's_mov_b32 m0, s{sT2}')
    g('s_nop 0')
    for k in range(4): g(f'buffer_load_dwordx4 v{vDm}, s[{SWS}:{SWS+3}], s{sT1} offen offset:{1024*k} lds')
    g(f's_lshl_b32 s{sT0}, s{sCh}, 1')
    g(f'v_mov_b32 v{vDs}, s{sT0}')
    g(f'global_load_ushort v{vDs}, v{vDs}, s[8:9]')
    g(f"""v_and_b32 v{vT[0]}, 15, v{vLane}
v_lshrrev_b32 v{vT[1]}, 4, v{vLane}
v_lshrrev_b32 v{vT[2]}, 1, v{vT[1]}
v_lshl_add_u32 v{vF}, v{vT[2]}, 4, v{vT[0]}
v_sub_u32 v{vF+1}, v{vT[0]}, v{vT[2]}
v_and_b32 v{vG}, 1, v{vT[1]}
v_lshlrev_b32 v{vF+2}, 3, v{vG}
v_sub_u32 v{vF}, v{vF+2}, v{vF}
v_add_u32 v{vF}, 2047, v{vF}
v_and_b32 v{vF}, 0xfffffffe, v{vF}
v_lshlrev_b32 v{vF}, 1, v{vF}
v_lshlrev_b32 v{vF+1}, 5, v{vF+1}
v_lshl_add_u32 v{vF+1}, v{vG}, 4, v{vF+1}
s_add_u32 s{sT0}, s{sLB}, {KIMG_STRIDE + 512 - 448}
v_add_u32 v{vG}, s{sT0}, v{vF+1}
v_and_b32 v{vT[0]}, 1, v{vT[0]}
v_xor_b32 v{vT[0]}, 1, v{vT[0]}
v_mul_u32_u24 v{vT[0]}, {KIMG_COPY}, v{vT[0]}
v_add_u32 v{vF}, v{vF}, v{vT[0]}
s_sub_u32 s{sT0}, s{sLB}, 448
v_add_u32 v{vF}, s{sT0}, v{vF}""")
    for q in range(1, 8): g(f'v_subrev_u32 v{vF+q}, {512*q}, v{vF}')
    if opts.get('cv_exit'): g(f's_branch {done_label}')
    g('s_waitcnt vmcnt(5)')
    gen_expand(g, sTB, sLB, sT0, vLane, vT, acc)
    if opts.get('cv_exit2'): g(f's_branch {done_label}')
    if opts.get('cvprio'): g(f's_setprio {int(opts.get("cvprio"))}')
    g('s_waitcnt vmcnt(0) lgkmcnt(0)')
    def rdF(q, r):
        o = 16 * (7 - r)
        return [f'ds_read2_b32 v[{F+4*q}:{F+4*q+1}], v{vF+q} offset0:{o} offset1:{o+1}', f'ds_read2_b32 v[{F+4*q+2}:{F+4*q+3}], v{vF+q} offset0:{o+2} offset1:{o+3}']
    def rdG(sp, r):
        return [f'ds_read_b128 v[{G+4*sp}:{G+4*sp+3}], v{vG} offset:{512*sp - 64*r + 448}']
    for q in range(8):
        for l in rdF(q, 0) + rdG(7-q, 0): g(l)
    for r in range(8):
        for q in range(8):
            if q == 0: g('s_waitcnt lgkmcnt(0)' if r == 0 else 's_waitcnt lgkmcnt(3)')
            if q == 0 and r > 0:
                pass
            for t in range(7, q-1, -1):
                sp = t - q
                if r > 0 and q == 0 and t == 0: g('s_waitcnt lgkmcnt(0)')
                if r > 0 and q == 7: g('s_waitcnt lgkmcnt(15)') if False else None
                C = '0' if (r == 0 and q == 0) else f'v[{acc+4*t}:{acc+4*t+3}]'
                if not opts.get('cv_nomfma'): g(f'v_mfma_f32_16x16x32_bf16 v[{acc+4*t}:{acc+4*t+3}], v[{F+4*q}:{F+4*q+3}], v[{G+4*sp}:{G+4*sp+3}], {C}')
            if r < 7:
                for l in rdF(q, r+1) + rdG(7-q, r+1): g(l)
    g(f"""v_and_b32 v{vT[1]}, 15, v{vLane}
v_lshrrev_b32 v{vT[2]}, 4, v{vLane}
v_lshlrev_b32 v{vT[1]}, 5, v{vT[1]}
v_lshl_add_u32 v{vT[1]}, v{vT[2]}, 3, v{vT[1]}
s_add_u32 s{sT1}, s{sLB}, {KIMG_STRIDE + 512}
v_add_u32 v{vT[2]}, s{sT1}, v{vT[1]}
s_lshl_b32 s{sT0}, s{sCh}, 12
s_add_u32 s{sT0}, s{sT0}, {YT_OFF}""")
    for t in range(8): g(f'ds_read_b64 v[{G+2*t}:{G+2*t+1}], v{vT[2]} offset:{512*t}')
    g(f'v_lshlrev_b32 v{F}, 16, v{vDs}')
    g(f'v_mov_b32 v{F+1}, v{F}')
    g('s_waitcnt lgkmcnt(0)')
    for t in range(8):
        u = F + 4 + 4*(t % 2)
        g(f'v_lshlrev_b32 v{u}, 16, v{G+2*t}')
        g(f'v_and_b32 v{u+1}, 0xffff0000, v{G+2*t}')
        g(f'v_lshlrev_b32 v{u+2}, 16, v{G+2*t+1}')
        g(f'v_and_b32 v{u+3}, 0xffff0000, v{G+2*t+1}')
        g(f'v_pk_fma_f32 v[{acc+4*t}:{acc+4*t+1}], v[{u}:{u+1}], v[{F}:{F+1}], v[{acc+4*t}:{acc+4*t+1}]')
        g(f'v_pk_fma_f32 v[{acc+4*t+2}:{acc+4*t+3}], v[{u+2}:{u+3}], v[{F}:{F+1}], v[{acc+4*t+2}:{acc+4*t+3}]')
        g(f'v_cvt_pk_bf16_f32 v{acc+4*t}, v{acc+4*t}, v{acc+4*t+1}')
        g(f'v_cvt_pk_bf16_f32 v{acc+4*t+1}, v{acc+4*t+2}, v{acc+4*t+3}')
        g(f'buffer_store_dwordx2 v[{acc+4*t}:{acc+4*t+1}], v{vT[1]}, s[{SWS}:{SWS+3}], s{sT0} offen offset:{512*t}')
    g(f's_branch {done_label}')

def gen_backtr(g, done_label, opts={}):
    SWS, SO = 4, 8
    sWave, sP, sA, sB, sT0, sT1, sT2, sT3 = range(16, 24)
    srd(g, SWS, P_WS); srd(g, SO, P_OUT)
    vLane = 1; vT = [2, 3, 4, 5]
    g(f"""v_lshrrev_b32 v{vT[0]}, 6, v0
v_and_b32 v{vLane}, 63, v0
v_readfirstlane_b32 s{sWave}, v{vT[0]}
s_lshl_b32 s{sP}, s2, 3
s_add_u32 s{sP}, s{sP}, s{sWave}
s_and_b32 s{sA}, s{sP}, 15
s_lshr_b32 s{sB}, s{sP}, 4
s_mul_i32 s{sT0}, s{sB}, {32*4096}
s_lshl_b32 s{sT1}, s{sA}, 8
s_add_u32 s{sT0}, s{sT0}, s{sT1}
s_add_u32 s{sT0}, s{sT0}, {YT_OFF}
s_mul_i32 s{sT1}, s{sA}, {128*2304}
s_lshl_b32 s{sB}, s{sB}, 6
s_add_u32 s{sT1}, s{sT1}, s{sB}
v_lshrrev_b32 v{vT[2]}, 2, v{vLane}
v_and_b32 v{vT[3]}, 3, v{vLane}
v_lshlrev_b32 v{vT[0]}, 15, v{vT[3]}
v_lshl_add_u32 v{vT[0]}, v{vT[2]}, 4, v{vT[0]}
v_mul_u32_u24 v{vT[1]}, {8*2304}, v{vT[2]}
v_lshl_add_u32 v{vT[1]}, v{vT[3]}, 4, v{vT[1]}""")
    g('s_waitcnt lgkmcnt(0)')
    srd_fin(g, SWS, WS_USED); srd_fin(g, SO, L*2*D*2)
    A, B = 8, 40
    for c in range(8):
        g(f'buffer_load_dwordx4 v[{A+4*c}:{A+4*c+3}], v{vT[0]}, s[{SWS}:{SWS+3}], s{sT0} offen')
        if c < 7: g(f's_add_u32 s{sT0}, s{sT0}, 4096')
    g('s_waitcnt vmcnt(0)')
    emit_8x8(g, A, B, sT2, sT3)
    for e in range(8):
        g(f'buffer_store_dwordx4 v[{B+4*e}:{B+4*e+3}], v{vT[1]}, s[{SO}:{SO+3}], s{sT1} offen')
        if e < 7: g(f's_add_u32 s{sT1}, s{sT1}, 2304')
    g(f's_branch {done_label}')
```

```python
import re

TRANS = ("v_exp_f32","v_log_f32","v_rcp_f32","v_rsq_f32","v_sqrt_f32","v_sin_f32","v_cos_f32",
         "v_exp_f16","v_log_f16","v_rcp_f16","v_rsq_f16","v_sqrt_f16","v_sin_f16","v_cos_f16","v_rcp_iflag_f32")

def parse_regs(tok):
    t = tok.strip()
    t = t.lstrip('-')
    if t.startswith('|') and t.endswith('|'): t = t[1:-1]
    m = re.fullmatch(r'abs\((.*)\)', t)
    if m: t = m.group(1)
    m = re.fullmatch(r'neg\((.*)\)', t)
    if m: t = m.group(1)
    m = re.fullmatch(r'([vsa])(\d+)', t)
    if m: return [(m.group(1), int(m.group(2)))]
    m = re.fullmatch(r'([vsa])\[(\d+):(\d+)\]', t)
    if m: return [(m.group(1), i) for i in range(int(m.group(2)), int(m.group(3))+1)]
    if t in ('vcc',): return [('x','vcc_lo'),('x','vcc_hi')]
    if t in ('vcc_lo','vcc_hi','m0','exec_lo','exec_hi','scc'): return [('x',t)]
    if t == 'exec': return [('x','exec_lo'),('x','exec_hi')]
    return []

class Ins:
    __slots__ = ('text','op','ops','cls','defs','uses','passes','mods','label','srcC','srcAB','wide_store','isnop','nopn','comment')
    def __init__(self, text):
        self.text = text
        body = text.split(';')[0].strip()
        self.label = None
        self.defs = set(); self.uses = set(); self.passes = 0
        self.srcC = set(); self.srcAB = set(); self.wide_store = set()
        self.isnop = False; self.nopn = 1
        if body.endswith(':') and ' ' not in body:
            self.label = body[:-1]; self.op = None; self.cls = 'label'; self.ops = []; self.mods = ''
            return
        if body.startswith('.') or body == '':
            self.op = None; self.cls = 'dir'; self.ops = []; self.mods = ''
            return
        parts = body.split(None, 1)
        op = parts[0]
        for suf in ('_e32','_e64'):
            if op.endswith(suf): op = op[:-len(suf)]
        self.op = op
        rest = parts[1] if len(parts) > 1 else ''
        ops = []; cur = ''; depth = 0
        for ch in rest:
            if ch in '[(': depth += 1
            if ch in '])': depth -= 1
            if ch == ',' and depth == 0: ops.append(cur.strip()); cur = ''
            else: cur += ch
        if cur.strip(): ops.append(cur.strip())
        mods = ''
        if ops:
            last = ops[-1].split()
            if len(last) > 1:
                ops[-1] = last[0]; mods = ' '.join(last[1:])
        self.ops = ops; self.mods = mods
        R = [parse_regs(o) for o in ops]
        def D(*idx):
            for i in idx:
                if i < len(R): self.defs.update(R[i])
        def U(*idx):
            for i in idx:
                if i < len(R): self.uses.update(R[i])
        allidx = list(range(len(R)))
        if op.startswith('v_mfma') or op.startswith('v_smfmac'):
            self.cls = 'mfma'
            D(0); U(1,2,3)
            self.srcAB = set(R[1]) | set(R[2]); self.srcC = set(R[3]) if len(R) > 3 else set()
            if '32x32' in op: self.passes = 8
            elif '16x16x32' in op or '16x16x16' in op: self.passes = 4
            elif '16x16x4_f32' in op: self.passes = 8
            else: raise ValueError('passes? ' + op)
            if '32x32x2_f32' in op: self.passes = 16
        elif op.startswith('v_'):
            self.cls = 'trans' if op in TRANS else 'valu'
            if op.startswith('v_cmp'):
                D(0); U(*allidx[1:])
            elif op in ('v_readlane_b32','v_readfirstlane_b32'):
                D(0); U(*allidx[1:])
            elif op in ('v_add_co_u32','v_sub_co_u32','v_subrev_co_u32','v_addc_co_u32','v_subb_co_u32','v_mad_u64_u32','v_div_scale_f32'):
                D(0,1); U(*allidx[2:])
            elif op.startswith('v_permlane') and 'swap' in op:
                D(0,1); U(0,1)
            elif op in ('v_fmac_f32','v_mac_f32','v_pk_fmac_f16','v_dot2c_f32_bf16','v_writelane_b32','v_fmac_f16'):
                D(0); U(*allidx)
            else:
                D(0); U(*allidx[1:])
                if 'UNUSED_PRESERVE' in mods or 'row_' in mods or 'wave_' in mods or 'quad_perm' in mods or 'op_sel' in mods and op in ('v_cvt_pk_f16_f32',):
                    U(0)
            self.uses.add(('x','exec_lo'))
        elif op.startswith('ds_'):
            self.cls = 'ds'
            if op.startswith('ds_read') or op in ('ds_bpermute_b32','ds_permute_b32','ds_swizzle_b32') or '_rtn_' in op:
                D(0); U(*allidx[1:])
                if 'd16' in op: U(0)
            else:
                U(*allidx)
        elif op.startswith('buffer_') or op.startswith('global_') or op.startswith('flat_'):
            self.cls = 'vmem'
            toks = mods.split()
            if op in ('buffer_inv','buffer_wbl2'):
                pass
            elif 'load' in op:
                if 'lds' in toks or '_lds_' in op:
                    U(*allidx); self.uses.add(('x','m0'))
                else:
                    D(0); U(*allidx[1:])
                    if 'd16' in op: U(0)
            elif 'store' in op:
                U(*allidx)
                if 'x4' in op or 'x3' in op:
                    self.wide_store = set(R[0]) if op.startswith('buffer_') else set(R[1])
            elif 'atomic' in op:
                if 'sc0' in toks: D(0)
                U(*allidx)
        elif op.startswith('s_'):
            self.cls = 'salu'
            if op == 's_nop':
                self.isnop = True; self.nopn = int(ops[0], 0) + 1
            elif op in ('s_waitcnt','s_barrier','s_endpgm','s_branch','s_setprio','s_sleep') or op.startswith('s_cbranch'):
                pass
            elif op.startswith('s_cmp') or op.startswith('s_bitcmp'):
                U(*allidx); self.defs.add(('x','scc'))
            elif op.startswith('s_load') or op.startswith('s_buffer_load') or op in ('s_memtime','s_memrealtime'):
                self.cls = 'smem'; D(0); U(*allidx[1:])
            elif 'saveexec' in op:
                D(0); U(*allidx[1:]); self.defs.update([('x','exec_lo'),('x','exec_hi')])
            else:
                D(0); U(*allidx[1:])
        else:
            raise ValueError('unknown instruction: ' + text)

def states_needed(p, c):
    need = 0
    pv = {r for r in p.defs if r[0] in 'va'}
    ps = {r for r in p.defs if r[0] == 's' or r in (('x','vcc_lo'),('x','vcc_hi'))}
    isvalu_p = p.cls in ('valu','trans')
    isvalu_c = c.cls in ('valu','trans')
    if isvalu_p:
        if c.cls == 'mfma' and pv & c.uses: need = max(need, 2)
        if c.op in ('v_readlane_b32','v_readfirstlane_b32') and pv & c.uses: need = max(need, 1)
        if isvalu_c and (c.op.startswith('v_permlane')) and pv & c.uses: need = max(need, 2)
        if isvalu_c and any(k in c.mods for k in ('row_','wave_','quad_perm','row_bcast')) and pv & c.uses: need = max(need, 2)
        if ps:
            if isvalu_c and ps & c.uses:
                need = max(need, 4 if c.op in ('v_readlane_b32','v_writelane_b32') else 2)
            if c.cls == 'vmem' and ps & c.uses: need = max(need, 5)
            if c.cls in ('salu','smem') and ps & c.uses: need = max(need, 1)
            if c.op and c.op.startswith('s_cbranch_vcc') and (('x','vcc_lo') in ps): need = max(need, 1)
        if p.cls == 'trans' and pv & c.uses and c.cls != 'trans': need = max(need, 1)
        if p.cls == 'trans' and pv & c.uses and c.cls == 'trans': need = max(need, 1)
        if 'dst_sel:WORD' in p.mods and isvalu_c and (pv & (c.uses | c.defs)): need = max(need, 1)
    if p.cls == 'mfma':
        D = p.defs
        if c.cls == 'mfma':
            if D & c.srcAB: need = max(need, {4:8, 8:12, 16:20}[p.passes])
            if D & c.srcC:
                if not (c.srcC == D and c.passes == p.passes): need = max(need, {4:6, 8:10, 16:18}[p.passes])
            elif D & c.defs:
                need = max(need, {4:6, 8:10, 16:18}[p.passes])
        elif isvalu_c or c.cls in ('vmem','ds'):
            if D & (c.uses | c.defs): need = max(need, {4:8, 8:12, 16:20}[p.passes])
        if isvalu_c and (p.srcC & c.defs): need = max(need, {4:3, 8:7, 16:15}[p.passes])
    if p.cls == 'salu' and ('x','m0') in p.defs and ('x','m0') in c.uses and (c.cls in ('vmem','ds') or c.op == 'v_writelane_b32' or c.op=='v_readlane_b32'): need = max(need, 1)
    if p.wide_store and (c.defs & p.wide_store):
        need = max(need, 2 if isvalu_c else 1)
    if p.cls == 'salu' and (('x','exec_lo') in p.defs) and c.cls == 'mfma': need = max(need, 1)
    return need

class Gen:
    def __init__(self):
        self.lines = []
        self.uid = 0
    def __call__(self, text):
        for l in text.split('\n'):
            l = l.strip()
            if l: self.lines.append(l)
    def label(self, name): self.lines.append(name + ':')
    def newlabel(self, base='L'):
        self.uid += 1
        return f'{base}_{self.uid}'
    def comment(self, s): self.lines.append('; ' + s)

def fix_hazards(lines, maxd=22, verbose=False):
    total = 0
    for it in range(50):
        ins = []
        for l in lines:
            if l.startswith(';'):
                i = Ins('.c'); i.text = l; ins.append(i)
            else:
                ins.append(Ins(l))
        labels = {i.label: k for k, i in enumerate(ins) if i.cls == 'label'}
        preds = [[] for _ in ins]
        for k, i in enumerate(ins):
            if k + 1 < len(ins):
                if not (i.op in ('s_branch','s_endpgm')): preds[k+1].append(k)
            if i.op and (i.op == 's_branch' or i.op.startswith('s_cbranch')):
                t = i.ops[0]
                if t in labels: preds[labels[t]].append(k)
                else: raise ValueError('unknown label ' + t)
        inserts = {}
        for k, c in enumerate(ins):
            if c.cls in ('label','dir'): continue
            need = 0
            stack = [(p, 0) for p in preds[k]]
            seen = {}
            while stack:
                p, d = stack.pop()
                if d >= maxd: continue
                if p in seen and seen[p] <= d: continue
                seen[p] = d
                pi = ins[p]
                if pi.cls in ('label','dir'):
                    nd = d
                else:
                    n = states_needed(pi, c)
                    if n > d:
                        need = max(need, n - d)
                        if verbose: print(f'hazard: [{pi.text}] -> [{c.text}] need {n} have {d}')
                    nd = d + (pi.nopn if pi.isnop else 1) + inserts.get(p, 0)
                for q in preds[p]: stack.append((q, nd))
            if need: inserts[k] = need
        if not inserts: break
        out = []
        for k, l in enumerate(lines):
            if k in inserts:
                n = inserts[k]
                while n > 0:
                    m = min(n, 16); out.append(f's_nop {m-1}'); n -= m; total += 1
            out.append(l)
        lines = out
        verbose = False
    return lines, total

class Regs:
    def __init__(self, start, limit, kind='v'):
        self.next = start; self.limit = limit; self.kind = kind; self.names = {}
    def alloc(self, n=1, align=1, name=None):
        a = (self.next + align - 1) // align * align
        if a + n > self.limit: raise RuntimeError(f'out of {self.kind} registers: want {n} at {a}, limit {self.limit}')
        self.next = a + n
        if name: self.names[name] = a
        return a
def vr(a, n=1): return f'v{a}' if n == 1 else f'v[{a}:{a+n-1}]'
def sr(a, n=1): return f's{a}' if n == 1 else f's[{a}:{a+n-1}]'

import subprocess, tempfile, os
def instr_sizes(lines):
    src = '.amdgcn_target "amdgcn-amd-amdhsa--gfx950"\n.text\n' + '\n'.join(l for l in lines if not l.startswith('.p2align')) + '\n'
    d = tempfile.mkdtemp()
    open(d + '/a.s', 'w').write(src)
    r = subprocess.run(['clang', '-x', 'assembler', '-target', 'amdgcn-amd-amdhsa', '-mcpu=gfx950', '-c', d + '/a.s', '-o', d + '/a.o'], capture_output=True, text=True)
    if r.returncode: raise RuntimeError(r.stderr[:3000])
    o = subprocess.run(['llvm-objdump', '-d', '--mcpu=gfx950', d + '/a.o'], capture_output=True, text=True).stdout
    enc = []
    for l in o.splitlines():
        m = re.search(r'// ([0-9A-F]{12}): ((?:[0-9A-F]{8} ?)+)', l)
        if m: enc.append(4 * len(m.group(2).split()))
    sizes = []; k = 0
    for l in lines:
        if l.startswith(';') or l.endswith(':') or l.startswith('.'): sizes.append(0)
        else: sizes.append(enc[k]); k += 1
    assert k == len(enc), (k, len(enc))
    return sizes

PROMOTABLE = ('v_exp_f32', 'v_mov_b32', 'v_mul_f32', 'v_add_f32', 'v_add_u32', 'v_lshlrev_b32', 'v_and_b32', 'v_sin_f32', 'v_cos_f32')
def align8(lines):
    sizes = instr_sizes(lines)
    out = []; inreg = False; off = 0; last_prom = None
    for l, sz in zip(lines, sizes):
        if l == '; @align8':
            inreg = True; off = 0; last_prom = None
            out.append('.p2align 6'); out.append(l); continue
        if l == '; @endalign8':
            inreg = False; out.append(l); continue
        if inreg and sz:
            if sz == 8 and off % 8 == 4:
                if last_prom is not None:
                    op, rest = out[last_prom].split(None, 1)
                    out[last_prom] = op + '_e64 ' + rest
                else:
                    out.append('s_nop 0')
                off += 4
            if sz == 8 or sz > 8: last_prom = None
            if sz == 4 and l.split()[0] in PROMOTABLE and 'e64' not in l and not re.search(r'0x[0-9a-f]{3,}|\b\d{3,}\b', l.split(None,1)[1].replace('v','',1) if False else ''):
                last_prom = len(out)
            off += sz
        if l.endswith(':') and inreg: last_prom = None
        out.append(l)
    return out

def stamp(g, opts, key, i):
    if opts.get('st') == key: g(f's_memtime s[{60+2*i}:{61+2*i}]')

class LdsTracker:
    def __init__(self, g):
        self.g = g; self.out = []
    def _wait_for(self, regs):
        j = -1
        for i, d in enumerate(self.out):
            if d & regs: j = i
        if j >= 0:
            n = len(self.out) - 1 - j
            self.g(f's_waitcnt lgkmcnt({min(n, 15)})')
            if n <= 15: self.out = self.out[j+1:]
            else: self.out = self.out[-15:]
    def __call__(self, text):
        for l in text.split('\n'):
            l = l.strip()
            if not l: continue
            if l.startswith(';') or l.endswith(':'):
                self.g(l); continue
            ins = Ins(l)
            regs = {r for r in (ins.uses | ins.defs) if r[0] == 'v'}
            self._wait_for(regs)
            self.g(l)
            if ins.cls == 'ds': self.out.append({r for r in ins.defs if r[0] == 'v'})
    def drain(self):
        self.g('s_waitcnt lgkmcnt(0)'); self.out = []
```

```python
from asmlib import *
from layout import *
import struct
import k_kgen

def f32bits(x): return struct.unpack('<I', struct.pack('<f', x))[0]

STAGE = 17408
import os
NSLOT = int(os.environ.get('NSLOT', 6))
NKS = 18
RSQ = 296
RSV = 264
STG = {4: None, 5: 3 * 17408 - 0, 6: 0, 7: 4 * 17408}[NSLOT] if NSLOT != 5 else None
KG_BASE = NSLOT * STAGE
LDS_BYTES = KG_BASE + 4 * k_kgen.TASK_LDS + 2 * k_kgen.TAB_LDS

def srd(g, s, kernarg_off):
    g(f's_load_dwordx2 s[{s}:{s+1}], s[0:1], {kernarg_off}')
def srd_fin(g, s, size):
    g(f's_mov_b32 s{s+2}, {size}')
    g(f's_mov_b32 s{s+3}, 0x20000')

def set_exec(g, mask):
    if mask == (1 << 64) - 1:
        g('s_mov_b64 exec, -1')
    elif mask < (1 << 31):
        g(f's_mov_b64 exec, {mask:#x}')
    else:
        lo = mask & 0xffffffff; hi = mask >> 32
        g('s_mov_b32 exec_lo, -1' if lo == 0xffffffff else f's_mov_b32 exec_lo, {lo:#x}')
        g('s_mov_b32 exec_hi, -1' if hi == 0xffffffff else f's_mov_b32 exec_hi, {hi:#x}')

def gen_qkv_gemm(g, done_label, opts={}):
    SX, SW, SO = 4, 8, 12
    sWave, sTw, sLw, sMt, sNt, sSec = 16, 17, 18, 19, 20, 21
    sKx, sKw, sKc, sMX, sMW, sT0, sT1, sT2, sScale, sGS, sOutBase, sKx2 = 22, 23, 24, 25, 26, 27, 28, 29, 30, 31, 32, 33
    V = Regs(1, 128)
    vLane = V.alloc(); vG = V.alloc(); vI = V.alloc()
    vXr = V.alloc(3); vWr = V.alloc(3)
    vEw = V.alloc()
    V.alloc(0, 2)
    vT = [V.alloc() for i in range(8)]
    VC = Regs(V.next, 256)
    acc = VC.alloc(72, 4)
    vXg = acc; vWg = acc + 1
    fr = [VC.alloc(44, 4), VC.alloc(44, 4)]
    kg = k_kgen.KGen(V.next + 8, 256, 76, vLane)
    CP = 200
    assert sScale % 2 == 0 and vT[6] % 2 == 0
    usekg = not opts.get('nokg')
    LCOMP = g.newlabel('g1_comp'); LKG = g.newlabel('g1_kg'); LQE = g.newlabel('qk_epi'); LVE = g.newlabel('v_epi')
    g(f'v_lshrrev_b32 v{vT[0]}, 6, v0')
    g(f'v_and_b32 v{vLane}, 63, v0')
    g(f'v_readfirstlane_b32 s{sWave}, v{vT[0]}')
    g(f's_cmp_lt_u32 s{sWave}, 4')
    g(f's_cbranch_scc1 {LCOMP}')
    load_kernargs(g, [B_X, B_WQKV, P_WS])
    def tile_map():
        g(f'''s_and_b32 s{sT0}, s2, 7
s_lshr_b32 s{sT1}, s2, 3
s_and_b32 s{sMt}, s{sT0}, 3
s_lshl_b32 s{sMt}, s{sMt}, 2
s_and_b32 s{sT2}, s{sT1}, 3
s_add_u32 s{sMt}, s{sMt}, s{sT2}
s_lshr_b32 s{sNt}, s{sT0}, 2
s_mul_i32 s{sNt}, s{sNt}, 6
s_lshr_b32 s{sT2}, s{sT1}, 2
s_add_u32 s{sNt}, s{sNt}, s{sT2}
s_lshr_b32 s{sSec}, s{sNt}, 2''')
    tile_map()
    ra, rb, rc = [int(x) for x in opts.get('rot', '5,20,7').split(',')]
    g(f'''s_and_b32 s{sT2}, s{sT1}, 3
s_mul_i32 s{sKc}, s{sT2}, {ra}
s_lshr_b32 s{sT2}, s{sT1}, 2
s_mul_i32 s{sT2}, s{sT2}, {rb}
s_add_u32 s{sKc}, s{sKc}, s{sT2}
s_mul_i32 s{sT2}, s{sT0}, {rc}
s_add_u32 s{sKc}, s{sKc}, s{sT2}
s_mul_i32 s{sT2}, s{sKc}, 3641
s_lshr_b32 s{sT2}, s{sT2}, 16
s_mul_i32 s{sT2}, s{sT2}, 18
s_sub_u32 s{sKc}, s{sKc}, s{sT2}
s_lshl_b32 s{sKx}, s{sKc}, 6
s_mul_i32 s{sKw}, s{sKc}, {32*3456}
s_sub_u32 s{sLw}, s{sWave}, 4''')
    g(f'''v_lshrrev_b32 v{vT[0]}, 2, v{vLane}
v_and_b32 v{vT[1]}, 3, v{vLane}
v_lshrrev_b32 v{vT[2]}, 2, v{vT[0]}
v_and_b32 v{vT[2]}, 2, v{vT[2]}
v_xor_b32 v{vT[1]}, v{vT[1]}, v{vT[2]}
s_lshl_b32 s{sT0}, s{sMt}, 7
s_lshl_b32 s{sT1}, s{sLw}, 5
s_add_u32 s{sT0}, s{sT0}, s{sT1}
v_add_u32 v{vT[0]}, s{sT0}, v{vT[0]}
v_mul_u32_u24 v{vT[0]}, 1152, v{vT[0]}
v_lshl_add_u32 v{vXg}, v{vT[1]}, 4, v{vT[0]}''')
    g(f's_mul_i32 s{sT1}, s{sNt}, 288')
    g(f's_lshl_b32 s{sT0}, s{sLw}, 7')
    for jj in range(3):
        if jj < 2: g(f'v_add_u32 v{vT[0]}, s{sT0}, v{vLane}'); g(f's_add_u32 s{sT0}, s{sT0}, 64')
        else: g(f'v_add_u32 v{vT[0]}, 512, v{vLane}')
        g(f'''v_mul_u32_u24 v{vT[1]}, 3641, v{vT[0]}
v_lshrrev_b32 v{vT[1]}, 16, v{vT[1]}
v_mul_u32_u24 v{vT[2]}, 18, v{vT[1]}
v_sub_u32 v{vT[2]}, v{vT[0]}, v{vT[2]}
v_and_b32 v{vT[3]}, 19, v{vT[1]}
v_bfe_u32 v{vT[4]}, v{vT[1]}, 2, 1
v_lshl_add_u32 v{vT[3]}, v{vT[4]}, 3, v{vT[3]}
v_bfe_u32 v{vT[4]}, v{vT[1]}, 3, 1
v_lshl_add_u32 v{vT[3]}, v{vT[4]}, 2, v{vT[3]}
v_mul_u32_u24 v{vT[3]}, 3456, v{vT[3]}
v_lshl_add_u32 v{vT[3]}, v{vT[2]}, 4, v{vT[3]}
v_add_u32 v{vWg+jj}, s{sT1}, v{vT[3]}''')
    g(f's_lshl_b32 s{sMX}, s{sLw}, 11')
    g(f's_add_u32 s{sMW}, s{sMX}, 8192')
    g('s_waitcnt lgkmcnt(0)')
    srd_from(g, SX, B_X, L*D*2); srd_from(g, SW, B_WQKV, D*3*D*2); srd_from(g, SO, P_WS, WS_USED)
    stamp(g, opts, 'g1', 0)
    NL = 4
    def dma_stage(s):
        sb = (s % NSLOT) * STAGE
        for j in range(2):
            g(f's_add_u32 m0, s{sMX}, {sb + 1024*j}')
            g(f's_add_u32 s{sKx2}, s{sKx}, {16*1152*j}')
            g(f'buffer_load_dwordx4 v{vXg}, s[{SX}:{SX+3}], s{sKx2} offen lds')
            g(f's_add_u32 m0, s{sMW}, {sb + 1024*j}')
            if j == 0: g(f's_add_u32 s{sKc}, s{sKc}, 1')
            else: g(f's_cmp_eq_u32 s{sLw}, {s % 4}')
            g(f'buffer_load_dwordx4 v{vWg+j}, s[{SW}:{SW+3}], s{sKw} offen lds')
        Ls = g.newlabel('nox')
        g(f's_mov_b32 m0, {sb + 8192 + 8192}')
        g(f's_cbranch_scc0 {Ls}')
        g(f'buffer_load_dwordx4 v{vWg+2}, s[{SW}:{SW+3}], s{sKw} offen lds')
        g.label(Ls)
        g(f's_add_u32 s{sKx}, s{sKx}, 64')
        g(f's_add_u32 s{sKw}, s{sKw}, {32*3456}')
        g(f's_cmp_eq_u32 s{sKc}, {NKS}')
        g(f's_cselect_b32 s{sKc}, 0, s{sKc}')
        g(f's_cselect_b32 s{sKx}, 0, s{sKx}')
        g(f's_cselect_b32 s{sKw}, 0, s{sKw}')
    g('s_barrier')
    NPRO = int(opts.get('npro', 5))
    for s in range(NPRO): dma_stage(s)
    issued = NPRO
    stamp(g, opts, 'g1', 1)
    g(f's_waitcnt vmcnt({NL*(issued-1)})')
    g('s_barrier')
    stamp(g, opts, 'g1', 3)
    depth = int(opts.get('depth', NSLOT))
    n = 0
    while issued < min(NKS, depth) and n < 2:
        dma_stage(issued); issued += 1; n += 1
    def kg_setup():
        g(f'''s_lshr_b32 s{sT0}, s{sLw}, 1
s_lshl_b32 s{kg.sCh}, s2, 1
s_add_u32 s{kg.sCh}, s{kg.sCh}, s{sT0}
s_and_b32 s{kg.sHf}, s{sLw}, 1
s_mul_i32 s{kg.sLB}, s{sT0}, {2*k_kgen.TASK_LDS}
s_add_u32 s{kg.sLB}, s{kg.sLB}, {KG_BASE}
s_mul_i32 s{kg.sTB}, s{sT0}, {k_kgen.TAB_LDS}
s_add_u32 s{kg.sTB}, s{kg.sTB}, {KG_BASE + 4*k_kgen.TASK_LDS}''')
    for s in range(NKS - 1):
        g(f's_waitcnt vmcnt({NL*max(issued - 1 - (s+1), 0)})')
        g('s_barrier')
        n = 0
        while issued < NKS and issued <= s + depth and n < 2:
            dma_stage(issued); issued += 1; n += 1
        if s == 5: stamp(g, opts, 'g1', 4)
    if usekg:
        kg_setup()
        Lf = g.newlabel('g1_fin')
        g(f's_cmp_eq_u32 s{kg.sHf}, 1')
        g(f's_cbranch_scc1 {Lf}')
        ch = kg.finish_chunks()
        for l in ch[0] + ch[1]: g(l)
        g('s_waitcnt lgkmcnt(0)')
        for l in ch[2] + ch[3]: g(l)
        g('s_waitcnt lgkmcnt(0)')
        kg.tail3(g, SO, anyhf=True)
        g.label(Lf)
    stamp(g, opts, 'g1', 5)
    g(f's_cmp_eq_u32 s{sSec}, 2')
    g(f's_cbranch_scc1 {LVE}')
    g(f's_branch {LQE}')

    g.label(LCOMP)
    g(f's_mov_b32 s{sTw}, s{sWave}')
    if usekg:
        load_kernargs(g, [A_LAR, A_AIM, A_CR, A_CI, A_LDT])
        g(f'''s_lshr_b32 s{sT0}, s{sTw}, 1
s_lshl_b32 s{kg.sCh}, s2, 1
s_add_u32 s{kg.sCh}, s{kg.sCh}, s{sT0}
s_and_b32 s{kg.sHf}, s{sTw}, 1
s_mul_i32 s{kg.sLB}, s{sTw}, {k_kgen.TASK_LDS}
s_add_u32 s{kg.sLB}, s{kg.sLB}, {KG_BASE}''')
        g('s_waitcnt lgkmcnt(0)')
        kg.loads(g)
    load_kernargs(g, [P_WS])
    tile_map()
    g('s_barrier')
    if usekg:
        g('s_waitcnt vmcnt(0)')
        stamp(g, opts, 'g1', 2)
        if opts.get('kprio'): g(f's_setprio {int(opts.get("kprio"))}')
        if opts.get('kgdup'):
            p0 = kg.prm[0]
            for r in range(9): g(f'v_mov_b32 v{240+r}, v{p0+r}')
            for l in kg.body(): g('s_waitcnt lgkmcnt(0)' if l == 'NEXT' else l)
            for r in range(9): g(f'v_mov_b32 v{p0+r}, v{240+r}')
        for l in kg.body(): g('s_waitcnt lgkmcnt(0)' if l == 'NEXT' else l)
        kg.publish(g)
        if opts.get('kprio'): g('s_setprio 0')
    g(f'v_lshrrev_b32 v{vG}, 4, v{vLane}')
    g(f'v_and_b32 v{vI}, 15, v{vLane}')
    g(f'''v_lshrrev_b32 v{vT[0]}, 2, v{vI}
v_and_b32 v{vT[0]}, 2, v{vT[0]}
v_xor_b32 v{vT[0]}, v{vT[0]}, v{vG}
v_lshlrev_b32 v{vT[0]}, 4, v{vT[0]}
s_lshl_b32 s{sT0}, s{sTw}, 5
v_add_u32 v{vT[1]}, s{sT0}, v{vI}
v_lshl_add_u32 v{vXr}, v{vT[1]}, 6, v{vT[0]}''')
    g(f'''v_lshrrev_b32 v{vT[0]}, 1, v{vG}
v_lshlrev_b32 v{vT[0]}, 4, v{vT[0]}
v_and_b32 v{vT[1]}, 1, v{vG}
v_lshl_add_u32 v{vT[0]}, v{vT[1]}, 2, v{vT[0]}
v_lshrrev_b32 v{vT[1]}, 2, v{vI}
v_add_u32 v{vT[0]}, v{vT[0]}, v{vT[1]}
v_mul_u32_u24 v{vT[0]}, 288, v{vT[0]}
v_and_b32 v{vT[1]}, 3, v{vI}
v_lshl_add_u32 v{vWr}, v{vT[1]}, 3, v{vT[0]}
v_add_u32 v{vXr+1}, {3*STAGE}, v{vXr}
v_add_u32 v{vWr+1}, {3*STAGE}, v{vWr}
v_add_u32 v{vXr+2}, {6*STAGE}, v{vXr}
v_add_u32 v{vWr+2}, {6*STAGE}, v{vWr}''')
    g('s_waitcnt lgkmcnt(0)')
    srd_from(g, SO, P_WS, WS_USED)
    LV = g.newlabel('qkv_v')
    NCT = 9
    KG_DONE = 15
    def mainloop(isV):
        def reads(s, fs):
            sl = s % NSLOT
            bank = sl // 3
            sb = (sl % 3) * STAGE
            ax = vXr + bank; aw = vWr + bank
            out = []
            for m in range(2):
                out.append(f'ds_read_b128 v[{fs+4*m}:{fs+4*m+3}], v{ax} offset:{sb + m*1024}')
            for c in range(NCT):
                for h in range(2):
                    r = fs + 8 + 4*c + 2*h
                    out.append(f'ds_read_b64_tr_b16 v[{r}:{r+1}], v{aw} offset:{sb + 8192 + h*2304 + c*32}')
            return out
        def mfmas(s, fs):
            out = []
            for c in range(NCT):
                for m in range(2):
                    a = acc + (c*2+m)*4
                    xf = f'v[{fs+4*m}:{fs+4*m+3}]'; wf = f'v[{fs+8+4*c}:{fs+8+4*c+3}]'
                    A, B = (xf, wf) if isV else (wf, xf)
                    C = '0' if s == 0 else f'v[{a}:{a+3}]'
                    out.append(f'v_mfma_f32_16x16x32_bf16 v[{a}:{a+3}], {A}, {B}, {C}')
            return out
        def stage_out(t, scale):
            c, m = t // 2, t % 2
            a = acc + t*4
            out = []
            if scale:
                out.append(f'v_pk_mul_f32 v[{a}:{a+1}], v[{a}:{a+1}], s[{sScale}:{sScale+1}] op_sel_hi:[1,0]')
                out.append(f'v_pk_mul_f32 v[{a+2}:{a+3}], v[{a+2}:{a+3}], s[{sScale}:{sScale+1}] op_sel_hi:[1,0]')
            out.append(f'v_cvt_pk_bf16_f32 v{a}, v{a}, v{a+1}')
            out.append(f'v_cvt_pk_bf16_f32 v{a+1}, v{a+2}, v{a+3}')
            off = (c*16*RSV + m*32) if isV else (c*32 + m*16*RSQ)
            out.append(f'ds_write_b64 v{vEw}, v[{a}:{a+1}] offset:{off}')
            return out
        g('s_barrier')
        for l in reads(0, fr[0]): g(l)
        for s in range(NKS - 1):
            g('s_waitcnt lgkmcnt(0)')
            g('s_barrier')
            rd = reads(s+1, fr[(s+1) % 2])
            mf = mfmas(s, fr[s % 2])
            k = 0
            for i, m_ in enumerate(mf):
                g(m_)
                nrd = 2 if i < 2 else 1
                for _ in range(nrd):
                    if k < len(rd): g(rd[k]); k += 1
            while k < len(rd): g(rd[k]); k += 1
        g('s_waitcnt lgkmcnt(0)')
        mf = mfmas(NKS-1, fr[(NKS-1) % 2])
        LAG = 4
        def last(scale):
            for i in range(len(mf) + LAG):
                if i < len(mf): g(mf[i])
                if i >= LAG:
                    for l in stage_out(i - LAG, scale): g(l)
        if isV:
            last(False)
        else:
            Lq = g.newlabel('g1_q'); Lz = g.newlabel('g1_z')
            g(f's_cmp_eq_u32 s{sSec}, 0')
            g(f's_cbranch_scc1 {Lq}')
            last(False)
            g(f's_branch {Lz}')
            g.label(Lq)
            g(f's_mov_b32 s{sScale}, {f32bits(QSCALE):#x}')
            last(True)
            g.label(Lz)
    g(f's_cmp_eq_u32 s{sSec}, 2')
    g(f's_cbranch_scc1 {LV}')
    g(f'''s_lshl_b32 s{sT0}, s{sTw}, 5
v_add_u32 v{vT[0]}, s{sT0}, v{vI}
v_mul_u32_u24 v{vT[0]}, {RSQ}, v{vT[0]}
v_lshl_add_u32 v{vEw}, v{vG}, 3, v{vT[0]}
v_add_u32 v{vEw}, {STG}, v{vEw}''')
    mainloop(False)
    g(f's_branch {LQE}')
    g.label(LV)
    g(f'''v_mul_u32_u24 v{vT[0]}, {RSV}, v{vI}
v_lshl_add_u32 v{vT[0]}, v{vG}, 3, v{vT[0]}
s_lshl_b32 s{sT0}, s{sTw}, 6
s_add_u32 s{sT0}, s{sT0}, {STG}
v_add_u32 v{vEw}, s{sT0}, v{vT[0]}''')
    mainloop(True)
    g(f's_branch {LVE}')

    def outbase():
        g(f'''s_cmp_eq_u32 s{sSec}, 0
s_mov_b32 s{sGS}, {REC}
s_cselect_b32 s{sGS}, {REC_K}, s{sGS}
s_and_b32 s{sT0}, s{sNt}, 3
s_lshl_b32 s{sT0}, s{sT0}, 3
s_add_u32 s{sT0}, s{sT0}, s{sWave}
s_lshl_b32 s{sT0}, s{sT0}, 6
s_lshl_b32 s{sT1}, s{sMt}, 2
s_add_u32 s{sT0}, s{sT0}, s{sT1}
s_mul_i32 s{sOutBase}, s{sT0}, s{sGS}
s_cmp_eq_u32 s{sSec}, 0
s_cselect_b32 s{sT1}, {Q_OFF}, {KV_OFF}
s_add_u32 s{sOutBase}, s{sOutBase}, s{sT1}
s_cmp_eq_u32 s{sSec}, 2
s_cselect_b32 s{sT1}, {REC_K}, 0
s_add_u32 s{sOutBase}, s{sOutBase}, s{sT1}''')
    def kg_end():
        return

    g.label(LQE)
    outbase()
    vA, vB, vC, vD = vT[0], vT[1], vT[2], vT[3]
    g(f'''v_and_b32 v{vA}, 31, v{vLane}
v_mul_u32_u24 v{vA}, {RSQ}, v{vA}
v_lshrrev_b32 v{vB}, 5, v{vLane}
v_lshl_add_u32 v{vA}, v{vB}, 4, v{vA}
s_mul_i32 s{sT0}, s{sWave}, 36
s_add_u32 s{sT0}, s{sT0}, {STG}
v_add_u32 v{vA}, s{sT0}, v{vA}
v_lshlrev_b32 v{vB}, 4, v{vLane}''')
    g(f'''v_lshrrev_b32 v{vC}, 3, v{vLane}
v_and_b32 v{vD}, 7, v{vLane}
v_mul_lo_u32 v{vT[4]}, v{vC}, s{sGS}
v_lshl_add_u32 v{vT[4]}, v{vD}, 4, v{vT[4]}
v_add_u32 v{vT[4]}, 1024, v{vT[4]}
v_lshlrev_b32 v{vC}, 5, v{vC}
v_lshl_add_u32 v{vC}, v{vD}, 2, v{vC}
v_mul_u32_u24 v{vC}, {RSQ}, v{vC}
s_add_u32 s{sT0}, s{sT0}, 32
v_add_u32 v{vC}, s{sT0}, v{vC}''')
    g('s_waitcnt lgkmcnt(0)')
    g('s_barrier')
    stamp(g, opts, 'g1', 6)
    d0 = CP
    for tau in range(4):
        d = d0 + 4*tau
        g(f'ds_read2_b32 v[{d}:{d+1}], v{vA} offset0:0 offset1:1')
        g(f'ds_read2_b32 v[{d+2}:{d+3}], v{vA} offset0:2 offset1:3')
        if tau < 3: g(f'v_add_u32 v{vA}, {32*RSQ}, v{vA}')
    d = d0 + 16
    set_exec(g, (1 << 32) - 1)
    g(f'ds_read2_b32 v[{d}:{d+1}], v{vC} offset0:0 offset1:{RSQ//4}')
    g(f'ds_read2_b32 v[{d+2}:{d+3}], v{vC} offset0:{2*RSQ//4} offset1:{3*RSQ//4}')
    g('s_mov_b64 exec, -1')
    for tau in range(4):
        d = d0 + 4*tau
        g(f's_waitcnt lgkmcnt({2*(3-tau)+2})')
        g(f'buffer_store_dwordx4 v[{d}:{d+3}], v{vB}, s[{SO}:{SO+3}], s{sOutBase} offen')
        if tau < 3:
            g(f's_add_u32 s{sOutBase}, s{sOutBase}, s{sGS}')
    g(f's_mul_i32 s{sT0}, s{sGS}, 3')
    g(f's_sub_u32 s{sOutBase}, s{sOutBase}, s{sT0}')
    g('s_waitcnt lgkmcnt(0)')
    set_exec(g, (1 << 32) - 1)
    d = d0 + 16
    g(f'buffer_store_dwordx4 v[{d}:{d+3}], v{vT[4]}, s[{SO}:{SO+3}], s{sOutBase} offen')
    g('s_mov_b64 exec, -1')
    kg_end()
    stamp(g, opts, 'g1', 7)
    g(f's_branch {done_label}')

    g.label(LVE)
    outbase()
    g(f'''v_mov_b32 v{vT[6]}, 0x3f803f80
v_mov_b32 v{vT[7]}, 0x3f803f80
v_lshlrev_b32 v{vT[0]}, 3, v{vLane}
v_add_u32 v{vT[0]}, {STG + 144*RSV}, v{vT[0]}''')
    set_exec(g, (1 << 32) - 1)
    g(f'ds_write_b64 v{vT[0]}, v[{vT[6]}:{vT[7]}]')
    g('s_mov_b64 exec, -1')
    vA, vA2, vB, vB2 = vT[0], vT[1], vT[2], vT[3]
    g(f's_mul_i32 s{sT0}, s{sWave}, 18')
    for (dst, add) in ((vA, 0), (vA2, 64)):
        g(f'''v_add_u32 v{vT[4]}, {add}, v{vLane}
v_mul_u32_u24 v{vT[5]}, 3450, v{vT[4]}
v_lshrrev_b32 v{vT[5]}, 16, v{vT[5]}
v_mul_u32_u24 v{vT[6]}, 19, v{vT[5]}
v_sub_u32 v{vT[6]}, v{vT[4]}, v{vT[6]}
v_add_u32 v{vT[4]}, s{sT0}, v{vT[6]}
v_cmp_eq_u32 vcc, 18, v{vT[6]}
v_mov_b32 v{vT[6]}, 144
v_lshrrev_b32 v{vT[7]}, 1, v{vT[5]}
v_cndmask_b32 v{vT[4]}, v{vT[4]}, v{vT[6]}, vcc
v_mul_u32_u24 v{vT[4]}, {RSV}, v{vT[4]}
v_lshl_add_u32 v{vT[4]}, v{vT[7]}, 5, v{vT[4]}
v_and_b32 v{vT[5]}, 1, v{vT[5]}
v_lshl_add_u32 v{dst}, v{vT[5]}, 3, v{vT[4]}
v_add_u32 v{dst}, {STG}, v{dst}''')
    g(f'v_lshlrev_b32 v{vB}, 4, v{vLane}')
    g('s_waitcnt lgkmcnt(0)')
    g('s_barrier')
    stamp(g, opts, 'g1', 6)
    d0 = CP
    for tau in range(4):
        d = d0 + 8*tau
        g(f'ds_read2_b64 v[{d}:{d+3}], v{vA} offset0:{tau*8} offset1:{tau*8+2}')
        g(f'ds_read2_b64 v[{d+4}:{d+7}], v{vA2} offset0:{tau*8} offset1:{tau*8+2}')
    for tau in range(4):
        d = d0 + 8*tau
        g(f's_waitcnt lgkmcnt({2*(3-tau)})')
        g(f'buffer_store_dwordx4 v[{d}:{d+3}], v{vB}, s[{SO}:{SO+3}], s{sOutBase} offen')
        set_exec(g, (1 << 12) - 1)
        g(f'buffer_store_dwordx4 v[{d+4}:{d+7}], v{vB}, s[{SO}:{SO+3}], s{sOutBase} offen offset:1024')
        g('s_mov_b64 exec, -1')
        if tau < 3: g(f's_add_u32 s{sOutBase}, s{sOutBase}, s{sGS}')
    kg_end()
    stamp(g, opts, 'g1', 7)
    g(f's_branch {done_label}')
```

```python
from asmlib import *
from layout import *
import struct
def f32bits(x): return struct.unpack('<I', struct.pack('<f', x))[0]
LOG2E = 1.4426950408889634
ROWB = 272
SCR = 16 * ROWB
TASK_LDS = 2 * SCR
TAB_LDS = 1344

class KGen:
    def __init__(self, vfree, vlimit, sfree, vLane):
        V = Regs(vfree, vlimit)
        self.vLane = vLane
        self.prm = [V.alloc() for _ in range(2)]
        self.cc = [V.alloc(2) for _ in range(2)]
        self.al = V.alloc(); self.be = V.alloc(); self.dt = V.alloc()
        self.Cp = V.alloc(2, 2); self.Co = V.alloc(2, 2)
        self.E1 = V.alloc(2, 2); self.E8 = V.alloc(2, 2); self.H1 = V.alloc(2, 2)
        self.Hs = [V.alloc(2, 2), V.alloc(2, 2)]
        self.W = [V.alloc(2, 2) for _ in range(8)]
        self.Z = [V.alloc(2, 2) for _ in range(4)]; self.T = [V.alloc(2, 2) for _ in range(2)]; self.pk = V.alloc(4)
        self.Yf = V.alloc(16, 4); self.Xf = V.alloc(16, 4); self.acc = V.alloc(12, 4)
        self.vWr = V.alloc(); self.vRd = V.alloc(); self.vA = [self.E1, self.E1+1, self.E8, self.E8+1]
        self.t = [V.alloc() for _ in range(3)]
        self.vend = V.next
        self.sB = [KA(A_LAR), KA(A_AIM), KA(A_CR), KA(A_CI), KA(A_LDT)]
        self.sCh, self.sHf, self.sLB, self.sTB, self.sT0, self.sT1, self.sScale, self.sT2 = range(sfree, sfree+8)
    def loads(self, g):
        k = self
        g(f's_lshl_b32 s{k.sT0}, s{k.sCh}, 8')
        g(f's_lshl_b32 s{k.sT1}, s{k.sHf}, 7')
        g(f'v_lshlrev_b32 v{k.t[0]}, 1, v{k.vLane}')
        g(f's_add_u32 s{k.sT2}, s{k.sT0}, s{k.sT1}')
        g(f'v_add_u32 v{k.t[1]}, s{k.sT2}, v{k.t[0]}')
        g(f's_xor_b32 s{k.sT1}, s{k.sT1}, 128')
        g(f's_add_u32 s{k.sT2}, s{k.sT0}, s{k.sT1}')
        g(f'v_add_u32 v{k.t[2]}, s{k.sT2}, v{k.t[0]}')
        g(f's_lshl_b32 s{k.sT0}, s{k.sCh}, 1')
        g(f'v_mov_b32 v{k.t[0]}, s{k.sT0}')
        g(f'global_load_ushort v{k.prm[0]}, v{k.t[1]}, s[{k.sB[0]}:{k.sB[0]+1}]')
        g(f'global_load_ushort v{k.prm[1]}, v{k.t[1]}, s[{k.sB[1]}:{k.sB[1]+1}]')
        for c in range(2):
            g(f'global_load_ushort v{k.cc[c]}, v{k.t[1]}, s[{k.sB[2+c]}:{k.sB[2+c]+1}]')
            g(f'global_load_ushort v{k.cc[c]+1}, v{k.t[2]}, s[{k.sB[2+c]}:{k.sB[2+c]+1}]')
        g(f'global_load_ushort v{k.dt}, v{k.t[0]}, s[{k.sB[4]}:{k.sB[4]+1}]')
        return 7
    def body(self):
        k = self; L = []
        g = L.append
        vT = k.t; dt = k.dt; lar, aim = k.prm
        sT0, sT1 = k.sT0, k.sT1
        g(f'v_lshlrev_b32 v{k.vWr}, 2, v{k.vLane}')
        g(f'v_and_b32 v{vT[0]}, 15, v{k.vLane}')
        g(f'v_add_u32 v{k.vWr}, s{k.sLB}, v{k.vWr}')
        g(f'v_mul_u32_u24 v{k.vRd}, {ROWB}, v{vT[0]}')
        g(f'v_lshrrev_b32 v{vT[0]}, 4, v{k.vLane}')
        g(f'v_lshlrev_b32 v{dt}, 16, v{dt}')
        g(f'v_lshl_add_u32 v{k.vRd}, v{vT[0]}, 4, v{k.vRd}')
        g(f'v_mul_f32 v{dt}, {f32bits(LOG2E):#x}, v{dt}')
        g(f'v_add_u32 v{k.vRd}, s{k.sLB}, v{k.vRd}')
        g(f'v_lshlrev_b32 v{lar}, 16, v{lar}')
        g(f'v_exp_f32 v{dt}, v{dt}')
        g(f'v_mul_f32 v{lar}, {f32bits(LOG2E):#x}, v{lar}')
        g(f'v_lshlrev_b32 v{aim}, 16, v{aim}')
        g(f'v_exp_f32 v{lar}, v{lar}')
        g(f'v_cvt_pk_bf16_f32 v{dt}, v{dt}, v{dt}')
        for c in range(2):
            for h in range(2): g(f'v_lshlrev_b32 v{k.cc[c]+h}, 16, v{k.cc[c]+h}')
        g(f'v_lshlrev_b32 v{dt}, 16, v{dt}')
        g(f'v_cvt_pk_bf16_f32 v{lar}, v{lar}, v{lar}')
        g(f'v_mul_f32 v{aim}, v{aim}, v{dt}')
        g(f'v_lshlrev_b32 v{lar}, 16, v{lar}')
        for h, dst in ((0, k.Cp), (1, k.Co)):
            for c in range(2): g(f'v_mul_f32 v{dst+c}, v{k.cc[c]+h}, v{dt}')
        g(f'v_mul_f32 v{lar}, v{lar}, v{dt}')
        g(f'v_mul_f32 v{k.be}, 0.15915494, v{aim}')
        g(f'v_mul_f32 v{k.al}, {f32bits(-LOG2E):#x}, v{lar}')
        m = vT[1]
        g(f'v_max_f32 v{m}, |v{k.Cp}|, |v{k.Cp+1}|')
        g(f'v_max3_f32 v{m}, |v{k.Co}|, |v{k.Co+1}|, v{m}')
        ps = [(k.E1, 1.0), (k.E8, 8.0), (k.H1, 128.0)]
        tm = [k.Z[0], k.Z[1], k.Z[2]]
        red = []
        for sh in (1, 2, 4, 8):
            red.append([f'v_mov_b32_dpp v{vT[2]}, v{m} row_ror:{sh} row_mask:0xf bank_mask:0xf', f'v_max_f32 v{m}, v{m}, v{vT[2]}'])
        for i, ((dst, p), t) in enumerate(zip(ps, tm)):
            g(f'v_mul_f32 v{t}, {f32bits(p):#x}, v{k.al}')
            g(f'v_mul_f32 v{t+1}, {f32bits(p):#x}, v{k.be}')
            g(red[i][0]); g(f'v_exp_f32 v{t}, v{t}'); g(red[i][1])
            g(f'v_fract_f32 v{t+1}, v{t+1}')
        g(red[3][0])
        for (dst, p), t in zip(ps, tm):
            g(f'v_cos_f32 v{dst}, v{t+1}')
            g(f'v_sin_f32 v{dst+1}, v{t+1}')
        g(red[3][1])
        for (dst, p), t in zip(ps, tm):
            g(f'v_mul_f32 v{dst}, v{dst}, v{t}')
            g(f'v_mul_f32 v{dst+1}, v{dst+1}, v{t}')
        g(f'v_readlane_b32 s{sT0}, v{m}, 0')
        g(f'v_readlane_b32 s{sT1}, v{m}, 16')
        g(f's_max_u32 s{sT0}, s{sT0}, s{sT1}')
        g(f'v_readlane_b32 s{sT1}, v{m}, 32')
        g(f's_max_u32 s{sT0}, s{sT0}, s{sT1}')
        g(f'v_readlane_b32 s{sT1}, v{m}, 48')
        g(f's_max_u32 s{sT0}, s{sT0}, s{sT1}')
        g(f's_lshr_b32 s{sT0}, s{sT0}, 23')
        g(f's_max_u32 s{sT0}, s{sT0}, 2')
        g(f's_min_u32 s{sT0}, s{sT0}, 252')
        g(f's_add_u32 s{k.sScale}, s{sT0}, 1')
        g(f's_lshl_b32 s{k.sScale}, s{k.sScale}, 23')
        g(f's_sub_u32 s{sT0}, 254, s{sT0}')
        g(f's_lshl_b32 s{sT0}, s{sT0}, 23')
        g(f'v_mul_f32 v{k.Cp}, s{sT0}, v{k.Cp}')
        g(f'v_mul_f32 v{k.Cp+1}, s{sT0}, v{k.Cp+1}')
        cnt = [0]
        T, Z, W, pk, vWr = k.T, k.Z, k.W, k.pk, k.vWr
        def put2(srcA, rowA, srcB, rowB, off, neg=False):
            r = pk + 2 * (cnt[0] & 1); cnt[0] += 1
            n = '-' if neg else ''
            g(f'v_cvt_pk_f16_f32 v{r}, v{srcA}, {n}v{srcA+1}')
            g(f'v_cvt_pk_f16_f32 v{r+1}, v{srcB}, {n}v{srcB+1}')
            g(f'ds_write_b32 v{vWr}, v{r} offset:{off + rowA*ROWB}')
            g(f'ds_write_b32 v{vWr}, v{r+1} offset:{off + rowB*ROWB}')
        def put1(src, row, off):
            r = pk + 2 * (cnt[0] & 1); cnt[0] += 1
            g(f'v_cvt_pk_f16_f32 v{r}, v{src}, v{src+1}')
            g(f'ds_write_b32 v{vWr}, v{r} offset:{off + row*ROWB}')
        def pmul(t, a, b): g(f'v_pk_mul_f32 v[{t}:{t+1}], v[{a}:{a+1}], v[{b}:{b+1}] op_sel_hi:[1,0]')
        def pfma(z, a, b, t): g(f'v_pk_fma_f32 v[{z}:{z+1}], v[{a}:{a+1}], v[{b}:{b+1}], v[{t}:{t+1}] op_sel:[1,1,0] op_sel_hi:[0,1,1] neg_lo:[1,0,0]')
        def cmul2(z0, a0, b0, z1, a1, b1):
            pmul(T[0], a0, b0); pmul(T[1], a1, b1); pfma(z0, a0, b0, T[0]); pfma(z1, a1, b1, T[1])
        def mm(tile):
            for q in range(4): g(f'ds_read_b128 v[{k.Xf+4*q}:{k.Xf+4*q+3}], v{k.vRd} offset:{SCR + 64*q}')
            return [f'v_mfma_f32_16x16x32_f16 v[{k.acc+4*tile}:{k.acc+4*tile+3}], v[{k.Xf+4*q}:{k.Xf+4*q+3}], v[{k.Yf+4*q}:{k.Yf+4*q+3}], ' +
                    ('0' if q == 0 else f'v[{k.acc+4*tile}:{k.acc+4*tile+3}]') for q in range(4)]
        E1, E8, H1 = k.E1, k.E8, k.H1
        E16 = k.Hs[0]
        g(f'v_mov_b32 v{Z[0]}, 1.0'); g(f'v_mov_b32 v{Z[0]+1}, 0')
        g(f'v_mov_b32 v{W[0]}, v{k.Cp}'); g(f'v_mov_b32 v{W[0]+1}, v{k.Cp+1}')
        cmul2(E16, E8, E8, W[1], W[0], E1)
        put2(Z[0], 0, E8, 1, 0, True)
        g(f'v_mov_b32 v{Z[0]}, v{E16}'); g(f'v_mov_b32 v{Z[0]+1}, v{E16+1}')
        evr, odr = [Z[0], Z[2]], [Z[1], Z[3]]
        cmul2(odr[0], E8, E16, W[2], W[1], E1)
        put2(evr[0], 2, odr[0], 3, 0, True)
        cur = 0
        for b in range(4, 16, 2):
            nx = 1 - cur
            cmul2(evr[nx], evr[cur], E16, odr[nx], odr[cur], E16)
            put2(evr[nx], b, odr[nx], b+1, 0, True)
            cur = nx
        for q in range(4): g(f'ds_read_b128 v[{k.Yf+4*q}:{k.Yf+4*q+3}], v{k.vRd} offset:{64*q}')
        H2 = k.Hs[0]; H3 = k.Hs[1]
        cmul2(W[3], W[2], E1, H2, H1, H1)
        cmul2(W[4], W[3], E1, H3, H2, H1)
        cmul2(W[5], W[4], E1, Z[0], W[0], H1)
        cmul2(W[6], W[5], E1, Z[1], W[1], H1)
        X = SCR
        put2(W[0], 0, W[1], 1, X); put2(W[2], 2, W[3], 3, X)
        put2(Z[0], 8, Z[1], 9, X)
        cmul2(W[7], W[6], E1, Z[2], W[2], H1)
        put2(W[4], 4, W[5], 5, X); put2(W[6], 6, W[7], 7, X)
        cmul2(Z[3], W[3], H1, Z[0], W[4], H1)
        put2(Z[2], 10, Z[3], 11, X)
        cmul2(Z[1], W[5], H1, Z[2], W[6], H1)
        put2(Z[0], 12, Z[1], 13, X)
        cmul2(Z[3], W[7], H1, Z[0], W[0], H2)
        put2(Z[2], 14, Z[3], 15, X)
        m0_ = mm(0)
        cmul2(Z[1], W[2], H2, Z[2], W[4], H2)
        put2(Z[0], 0, Z[1], 1, X)
        cmul2(Z[3], W[6], H2, Z[0], W[0], H3)
        put2(Z[2], 2, Z[3], 3, X)
        g('NEXT')
        for l in m0_: g(l)
        cmul2(Z[1], W[2], H3, Z[2], W[4], H3)
        put2(Z[0], 4, Z[1], 5, X)
        cmul2(Z[3], W[6], H3, H2, H3, H1)
        put2(Z[2], 6, Z[3], 7, X)
        Ha, Hb = H2, H3
        for a in range(4):
            cmul2(Z[0], W[0], Ha, Z[1], W[4], Ha)
            pmul(T[0], Ha, H1); pfma(Hb, Ha, H1, T[0])
            put2(Z[0], 8+2*a, Z[1], 9+2*a, X)
            Ha, Hb = Hb, Ha
        m1_ = mm(1)
        cmul2(Z[0], W[0], Ha, Hb, Ha, H1)
        cmul2(Z[1], W[0], Hb, Ha, Hb, H1)
        put2(Z[0], 0, Z[1], 1, X)
        g('NEXT')
        for l in m1_: g(l)
        for a in range(2, 8, 2):
            cmul2(Z[0], W[0], Ha, Hb, Ha, H1)
            cmul2(Z[1], W[0], Hb, Ha, Hb, H1)
            put2(Z[0], a, Z[1], a+1, X)
        pmul(T[0], W[0], Ha); pfma(Z[0], W[0], Ha, T[0])
        put1(Z[0], 8, X)
        m2_ = mm(2)
        g('NEXT')
        for l in m2_: g(l)
        return L
    def tail1(self, g):
        k = self
        L1 = g.newlabel('kg_t1')
        g(f'v_lshlrev_b32 v{k.t[2]}, 4, v{k.vLane}')
        g(f'v_add_u32 v{k.t[2]}, s{k.sLB}, v{k.t[2]}')
        g(f's_cmp_eq_u32 s{k.sHf}, 0')
        g(f's_cbranch_scc1 {L1}')
        for t in range(3): g(f'ds_write_b128 v{k.t[2]}, v[{k.acc+4*t}:{k.acc+4*t+3}] offset:{1024*t}')
        g.label(L1)
    def publish(self, g):
        k = self
        g(f'v_lshlrev_b32 v{k.t[2]}, 4, v{k.vLane}')
        g(f'v_add_u32 v{k.t[2]}, s{k.sLB}, v{k.t[2]}')
        g(f'v_mov_b32 v{k.t[0]}, s{k.sScale}')
        g(f'v_mov_b32 v{k.t[1]}, s{k.sLB}')
        for t in range(3): g(f'ds_write_b128 v{k.t[2]}, v[{k.acc+4*t}:{k.acc+4*t+3}] offset:{1024*t}')
        g(f'ds_write_b32 v{k.t[1]}, v{k.t[0]} offset:3072')
    def fetch(self, g):
        k = self
        g(f'v_lshlrev_b32 v{k.t[2]}, 4, v{k.vLane}')
        g(f'v_add_u32 v{k.t[2]}, s{k.sLB}, v{k.t[2]}')
        g(f'v_mov_b32 v{k.t[1]}, s{k.sLB}')
        for t in range(3): g(f'ds_read_b128 v[{k.acc+4*t}:{k.acc+4*t+3}], v{k.t[2]} offset:{1024*t}')
        g(f'ds_read_b32 v{k.t[0]}, v{k.t[1]} offset:3072')
        g('s_waitcnt lgkmcnt(0)')
        g(f'v_readfirstlane_b32 s{k.sScale}, v{k.t[0]}')
    def tail2(self, g):
        k = self; vT = k.t; vA = k.vA; acc = k.acc; Xf = k.Xf
        vb, vq, a, b = k.Yf, k.Yf+1, k.Yf+2, k.Yf+3
        L2 = g.newlabel('kg_t2')
        g(f's_cmp_eq_u32 s{k.sHf}, 1')
        g(f's_cbranch_scc1 {L2}')
        for t in range(3): g(f'ds_read_b128 v[{Xf+4*t}:{Xf+4*t+3}], v{vT[2]} offset:{TASK_LDS + 1024*t}')
        g(f'v_and_b32 v{vb}, 15, v{k.vLane}')
        g(f'v_lshrrev_b32 v{vq}, 4, v{k.vLane}')
        g(f'v_lshrrev_b32 v{a}, 1, v{vq}')
        g(f'v_lshlrev_b32 v{a}, 7, v{a}')
        g(f'v_and_b32 v{b}, 1, v{vq}')
        g(f'v_lshl_add_u32 v{a}, v{b}, 2, v{a}')
        g(f'v_lshl_add_u32 v{vA[0]}, v{vb}, 3, v{a}')
        g(f'v_lshlrev_b32 v{a}, 6, v{vq}')
        g(f'v_lshl_add_u32 v{b}, v{vb}, 1, v{a}')
        g(f'v_add_u32 v{vA[3]}, v{a}, v{vb}')
        g(f'v_lshl_add_u32 v{a}, v{vb}, 2, v{a}')
        g(f'v_cmp_gt_u32 vcc, 2, v{vq}')
        g(f'v_cndmask_b32 v{vA[1]}, v{b}, v{a}, vcc')
        g(f'v_add_u32 v{vA[1]}, 256, v{vA[1]}')
        g(f'v_add_u32 v{vA[3]}, 512, v{vA[3]}')
        g(f'v_mov_b32 v{a}, 64'); g(f'v_mov_b32 v{b}, 4')
        g(f'v_cndmask_b32 v{vA[2]}, v{a}, v{b}, vcc')
        for q in (0, 1, 3):
            g(f'v_lshlrev_b32 v{vA[q]}, 1, v{vA[q]}')
            g(f'v_add_u32 v{vA[q]}, s{k.sTB}, v{vA[q]}')
        g(f'v_add_u32 v{vA[2]}, v{vA[2]}, v{vA[1]}')
        g('s_waitcnt lgkmcnt(0)')
        for r in range(12): g(f'v_add_f32 v{acc+r}, v{acc+r}, v{Xf+r}')
        for t in range(3):
            for r in range(4): g(f'v_mul_f32 v{acc+4*t+r}, s{k.sScale}, v{acc+4*t+r}')
            g(f'v_cvt_pk_bf16_f32 v{acc+4*t}, v{acc+4*t}, v{acc+4*t+1}')
            g(f'v_cvt_pk_bf16_f32 v{acc+4*t+1}, v{acc+4*t+2}, v{acc+4*t+3}')
        g(f'ds_write_b16 v{vA[0]}, v{acc}')
        g(f'ds_write_b16_d16_hi v{vA[0]}, v{acc} offset:2')
        g(f'ds_write_b16 v{vA[0]}, v{acc+1} offset:4')
        g(f'ds_write_b16_d16_hi v{vA[0]}, v{acc+1} offset:6')
        g(f'ds_write_b16 v{vA[1]}, v{acc+4}')
        g(f'ds_write_b16_d16_hi v{vA[1]}, v{acc+4} offset:2')
        g(f'ds_write_b16 v{vA[2]}, v{acc+5}')
        g(f'ds_write_b16_d16_hi v{vA[2]}, v{acc+5} offset:2')
        g('s_mov_b32 exec_hi, 0xffff')
        g(f'ds_write_b16 v{vA[3]}, v{acc+8}')
        g('s_mov_b32 exec_hi, 0')
        g(f'ds_write_b16_d16_hi v{vA[3]}, v{acc+8} offset:32')
        g(f'ds_write_b16 v{vA[3]}, v{acc+9} offset:64')
        g(f'ds_write_b16_d16_hi v{vA[3]}, v{acc+9} offset:96')
        g('s_mov_b64 exec, -1')
        g.label(L2)
    def tail3(self, g, SWS, anyhf=False):
        k = self
        L3 = g.newlabel('kg_t3')
        if not anyhf:
            g(f's_cmp_eq_u32 s{k.sHf}, 0')
            g(f's_cbranch_scc1 {L3}')
        g(f'v_lshlrev_b32 v{k.t[0]}, 4, v{k.vLane}')
        g(f'v_add_u32 v{k.t[1]}, s{k.sTB}, v{k.t[0]}')
        g(f'ds_read_b128 v[{k.Xf}:{k.Xf+3}], v{k.t[1]}')
        g(f'ds_read_b128 v[{k.Xf+4}:{k.Xf+7}], v{k.t[1]} offset:1024')
        g(f's_mul_i32 s{k.sT0}, s{k.sCh}, {KTAB_STRIDE}')
        g(f's_add_u32 s{k.sT0}, s{k.sT0}, {KTAB_OFF}')
        g('s_waitcnt lgkmcnt(0)')
        g(f'buffer_store_dwordx4 v[{k.Xf}:{k.Xf+3}], v{k.t[0]}, s[{SWS}:{SWS+3}], s{k.sT0} offen')
        g(f's_mov_b64 exec, {(1 << 20) - 1:#x}')
        g(f'buffer_store_dwordx4 v[{k.Xf+4}:{k.Xf+7}], v{k.t[0]}, s[{SWS}:{SWS+3}], s{k.sT0} offen offset:1024')
        g('s_mov_b64 exec, -1')
        g.label(L3)

    def finish_chunks(self):
        k = self; vT = k.t; vA = k.vA; acc = k.acc; Xf = k.Xf
        vb, vq, a, b = k.Yf, k.Yf+1, k.Yf+2, k.Yf+3
        c0 = [f'v_lshlrev_b32 v{vT[2]}, 4, v{k.vLane}', f'v_add_u32 v{vT[2]}, s{k.sLB}, v{vT[2]}', f'v_mov_b32 v{vT[1]}, s{k.sLB}']
        c0 += [f'ds_read_b128 v[{acc+4*t}:{acc+4*t+3}], v{vT[2]} offset:{1024*t}' for t in range(3)]
        c0 += [f'ds_read_b32 v{vT[0]}, v{vT[1]} offset:3072']
        c0 += [f'ds_read_b128 v[{Xf+4*t}:{Xf+4*t+3}], v{vT[2]} offset:{TASK_LDS + 1024*t}' for t in range(3)]
        c1 = [f'v_and_b32 v{vb}, 15, v{k.vLane}', f'v_lshrrev_b32 v{vq}, 4, v{k.vLane}', f'v_lshrrev_b32 v{a}, 1, v{vq}', f'v_lshlrev_b32 v{a}, 7, v{a}',
              f'v_and_b32 v{b}, 1, v{vq}', f'v_lshl_add_u32 v{a}, v{b}, 2, v{a}', f'v_lshl_add_u32 v{vA[0]}, v{vb}, 3, v{a}', f'v_lshlrev_b32 v{a}, 6, v{vq}',
              f'v_lshl_add_u32 v{b}, v{vb}, 1, v{a}', f'v_add_u32 v{vA[3]}, v{a}, v{vb}', f'v_lshl_add_u32 v{a}, v{vb}, 2, v{a}', f'v_cmp_gt_u32 vcc, 2, v{vq}',
              f'v_cndmask_b32 v{vA[1]}, v{b}, v{a}, vcc', f'v_add_u32 v{vA[1]}, 256, v{vA[1]}', f'v_add_u32 v{vA[3]}, 512, v{vA[3]}',
              f'v_mov_b32 v{a}, 64', f'v_mov_b32 v{b}, 4', f'v_cndmask_b32 v{vA[2]}, v{a}, v{b}, vcc']
        for q in (0, 1, 3): c1 += [f'v_lshlrev_b32 v{vA[q]}, 1, v{vA[q]}', f'v_add_u32 v{vA[q]}, s{k.sTB}, v{vA[q]}']
        c1 += [f'v_add_u32 v{vA[2]}, v{vA[2]}, v{vA[1]}']
        c2 = [f'v_readfirstlane_b32 s{k.sScale}, v{vT[0]}']
        c2 += [f'v_add_f32 v{acc+r}, v{acc+r}, v{Xf+r}' for r in range(12)]
        for t in range(3):
            c2 += [f'v_mul_f32 v{acc+4*t+r}, s{k.sScale}, v{acc+4*t+r}' for r in range(4)]
            c2 += [f'v_cvt_pk_bf16_f32 v{acc+4*t}, v{acc+4*t}, v{acc+4*t+1}', f'v_cvt_pk_bf16_f32 v{acc+4*t+1}, v{acc+4*t+2}, v{acc+4*t+3}']
        c3 = [f'ds_write_b16 v{vA[0]}, v{acc}', f'ds_write_b16_d16_hi v{vA[0]}, v{acc} offset:2', f'ds_write_b16 v{vA[0]}, v{acc+1} offset:4',
              f'ds_write_b16_d16_hi v{vA[0]}, v{acc+1} offset:6', f'ds_write_b16 v{vA[1]}, v{acc+4}', f'ds_write_b16_d16_hi v{vA[1]}, v{acc+4} offset:2',
              f'ds_write_b16 v{vA[2]}, v{acc+5}', f'ds_write_b16_d16_hi v{vA[2]}, v{acc+5} offset:2', 's_mov_b32 exec_hi, 0xffff',
              f'ds_write_b16 v{vA[3]}, v{acc+8}', 's_mov_b32 exec_hi, 0', f'ds_write_b16_d16_hi v{vA[3]}, v{acc+8} offset:32',
              f'ds_write_b16 v{vA[3]}, v{acc+9} offset:64', f'ds_write_b16_d16_hi v{vA[3]}, v{acc+9} offset:96', 's_mov_b64 exec, -1']
        return [c0, c1, c2, c3]
```

```python
import sys
from asmlib import *
from layout import *
import k_gemm1, k_attn, k_ssm, k_gemm3

HEADER = open('concat_heads__ssm_conv_s4d__mha_block__prompt.s.ref').read().split('; Override launch')[0]

STORE_MOD = {}
def kernel_text(name, g, vgpr, sgpr=102):
    mod = STORE_MOD.get(name)
    if mod:
        g.lines = [l + ' ' + mod if l.startswith('buffer_store') else l for l in g.lines]
    lines, n = fix_hazards(g.lines)
    lines = align8(lines)
    out = [f'.globl {name}', '.p2align 8', f'.type {name},@function', f'{name}:']
    for l in lines:
        out.append(l if (l.endswith(':') or l.startswith(';') or l.startswith('.')) else '    ' + l)
    txt = '\n'.join(out) + '\n'
    kd = f'''.section .rodata,"a"
.p2align 6
.amdhsa_kernel {name}
  .amdhsa_next_free_vgpr {vgpr}
  .amdhsa_next_free_sgpr {sgpr}
  .amdhsa_accum_offset {(vgpr+3)//4*4}
  .amdhsa_group_segment_fixed_size 0
  .amdhsa_kernarg_size 104
  .amdhsa_user_sgpr_count 2
  .amdhsa_user_sgpr_kernarg_segment_ptr 1
  .amdhsa_system_sgpr_workgroup_id_x 1
.end_amdhsa_kernel
.text
'''
    return txt, kd, n

PROF_OFF = 200 * 1024 * 1024
def prof_begin(g, opts):
    if opts.get('prof'):
        g('s_mov_b32 s100, s2')
        g('s_memrealtime s[96:97]')
        g('s_memtime s[98:99]')
def prof_end(g, opts, launch_idx):
    if not opts.get('prof'): return
    g('s_waitcnt vmcnt(0) lgkmcnt(0)')
    g('s_memrealtime s[92:93]')
    g('s_memtime s[94:95]')
    g(f's_load_dwordx2 s[90:91], s[0:1], {P_WS}')
    g('s_waitcnt lgkmcnt(0)')
    g(f's_add_u32 s90, s90, {PROF_OFF + launch_idx*(1<<20)}')
    g('s_addc_u32 s91, s91, 0')
    g('s_sub_u32 s94, s94, s98')
    g('v_lshrrev_b32 v1, 6, v0')
    g('s_lshl_b32 s88, s100, 4')
    g('v_add_u32 v1, s88, v1')
    g('v_lshlrev_b32 v1, 4, v1')
    g('v_mov_b32 v4, s96')
    g('v_mov_b32 v5, s92')
    g('v_mov_b32 v6, s94')
    g('v_mov_b32 v7, 1')
    if ((opts.get('stamps') or opts.get('stampsk')) and launch_idx == 0) or (opts.get('stamps2') and launch_idx == 1):
        g('s_sub_u32 s60, s60, s98'); g('s_sub_u32 s62, s62, s98'); g('s_sub_u32 s64, s64, s98')
        g('v_mov_b32 v4, s60'); g('v_mov_b32 v5, s62'); g('v_mov_b32 v6, s64'); g('v_mov_b32 v7, s94')
    g('v_and_b32 v2, 63, v0')
    g('v_cmp_eq_u32 vcc, 0, v2')
    g('s_and_saveexec_b64 s[88:89], vcc')
    L = g.newlabel('prof')
    g(f's_cbranch_execz {L}')
    g('global_store_dwordx4 v1, v[4:7], s[90:91]')
    if opts.get('st'):
        g('v_lshlrev_b32 v1, 1, v1')
        g('v_add_u32 v1, 0x80000, v1')
        for q in range(2):
            for k in range(4):
                g(f's_sub_u32 s{60+2*(4*q+k)}, s{60+2*(4*q+k)}, s98')
                g(f'v_mov_b32 v{4+k}, s{60+2*(4*q+k)}')
            g(f'global_store_dwordx4 v1, v[4:7], s[90:91] offset:{16*q}')
    g.label(L)
    g('s_waitcnt vmcnt(0)')

def make_launch(name, idx, roles, opts, uid0):
    g = Gen(); g.uid = uid0
    total = sum(c for c, _ in roles)
    g(f's_cmp_ge_u32 s2, {total}')
    g(f's_cbranch_scc1 {name}_exit')
    prof_begin(g, opts)
    base = 0; labels = []
    for i, (c, fn) in enumerate(roles):
        labels.append(f'{name}_role{i}')
    base = 0
    for i, (c, fn) in enumerate(roles):
        base += c
        if i < len(roles) - 1:
            g(f's_cmp_lt_u32 s2, {base}')
            g(f's_cbranch_scc1 {labels[i]}')
    order = [len(roles) - 1] + list(range(len(roles) - 1))
    for i in order:
        c, fn = roles[i]
        b = sum(cc for cc, _ in roles[:i])
        g.label(labels[i])
        if b: g(f's_sub_u32 s2, s2, {b}')
        fn(g, f'{name}_done', opts)
    g.label(f'{name}_done')
    prof_end(g, opts, idx)
    g.label(f'{name}_exit')
    g('s_endpgm')
    return g, total

def build(opts):
    launches = []; texts = []; kds = []
    STORE_MOD.update({'k1_kernel': 'sc1', 'k2_kernel': 'sc1'})
    for k_ in ('k1', 'k2', 'k3'):
        if opts.get('st_' + k_): STORE_MOD[k_ + '_kernel'] = opts['st_' + k_].replace('+', ' ').replace('none', '')
    specs = [
        ('k1_kernel', [(192, k_gemm1.gen_qkv_gemm)] + ([] if opts.get('noaux') else [(64, k_ssm.gen_l1_aux)]), max(k_gemm1.LDS_BYTES, k_ssm.AUX_LDS), 256),
        ('k2_kernel', [(256, k_attn.gen_attn)] + ([] if opts.get('noconv') else [(144, k_ssm.gen_conv)]), max(k_attn.LDS_BYTES, k_ssm.CONV_LDS), 128),
        ('k3_kernel', [(192, k_gemm3.gen_outproj), (36, k_ssm.gen_backtr)], k_gemm3.LDS_BYTES, 128),
    ]
    for idx, (name, roles, lds, vg) in enumerate(specs):
        g, total = make_launch(name[:2], idx, roles, opts, 10000*idx)
        t, kd, n = kernel_text(name, g, vg)
        print(name, 'nops inserted', n, 'lines', len(g.lines), file=sys.stderr)
        launches.append((name, total, 512, lds)); texts.append(t); kds.append(kd)
    hdr = HEADER
    for (k, grid, blk, lds) in launches:
        hdr += f'; @launch kernel={k} grid=({grid},1,1) block=({blk},1,1) lds={lds}\n'
    src = hdr + '.amdgcn_target "amdgcn-amd-amdhsa--gfx950"\n.text\n'
    for t, kd in zip(texts, kds):
        src += t + kd
    return src

if __name__ == '__main__':
    out = sys.argv[1] if len(sys.argv) > 1 else 'out.s'
    opts = {}
    for a in sys.argv[2:]:
        if '=' in a: k, v = a.split('='); opts[k] = v
        else: opts[a] = True
    open(out, 'w').write(build(opts))
```
